```python
import torch

def _softmax(x, axis=-1):
    return torch.softmax(x, dim=axis)
def _gelu(x):
    return torch.nn.functional.gelu(x, approximate="tanh")
def _silu(x):
    return torch.nn.functional.silu(x)
def _sigmoid(x):
    return torch.sigmoid(x)
def _layernorm(x, axis=-1, eps=1e-5):
    m = x.mean(dim=axis, keepdim=True)
    v = x.var(dim=axis, keepdim=True, unbiased=False)
    return (x - m) / torch.sqrt(v + eps)
def _scatter_add(tgt, idx, src, axis=0):
    return tgt.clone().index_add_(axis, idx, src)
def _segment_sum(src, seg, n):
    out = torch.zeros((n,) + src.shape[1:], dtype=src.dtype)
    return out.index_add_(0, seg, src)
def _pad(x, pw):
    flat = tuple(v for pair in reversed(pw) for v in pair)
    return torch.nn.functional.pad(x, flat)

kernel_name = 'recurrent_scan__spectral_gfnet__swiglu_ffn__prompt'

def setup_inputs():

    _w = (lambda a: (lambda t: t.to(torch.bfloat16) if t.is_floating_point() else t)(torch.as_tensor(a)))
    def _A_setup():
        B, S, D = 1, 2048, 512
        Df = D // 2 + 1
        return {
            "x": _w((lambda *s: torch.randn(*s, dtype=torch.bfloat16) * 0.05)(B, S, D)),
            "w_r": _w((lambda *s: torch.randn(*s, dtype=torch.bfloat16) * 0.1)(S, Df) * 0.02),
            "w_i": _w((lambda *s: torch.randn(*s, dtype=torch.bfloat16) * 0.1)(S, Df) * 0.02),
        }
    _A_in = _A_setup()

    def _B_setup():
        B, S, D, F = 1, 2048, 512, 1792
        return {
            "x": _w((lambda *s: torch.randn(*s, dtype=torch.bfloat16) * 0.05)(B, S, D)),
            "w_gate": _w((lambda *s: torch.randn(*s, dtype=torch.bfloat16) * 0.05)(D, F)),
            "w_up": _w((lambda *s: torch.randn(*s, dtype=torch.bfloat16) * 0.05)(D, F)),
            "w_down": _w((lambda *s: torch.randn(*s, dtype=torch.bfloat16) * 0.05)(F, D)),
        }
    _B_in = _B_setup()

    return {
        "A_x": _A_in["x"],
        "A_w_r": _A_in["w_r"],
        "A_w_i": _A_in["w_i"],
        "B_x": _B_in["x"],
        "B_w_gate": _B_in["w_gate"],
        "B_w_up": _B_in["w_up"],
        "B_w_down": _B_in["w_down"],
    }

def reference(A_x, A_w_r, A_w_i, B_x, B_w_gate, B_w_up, B_w_down):
    def _A_ref(x, w_r, w_i):
        B, S, D = x.shape
        X = (lambda x, axes=(-2,-1): torch.fft.rfft2(x.float(), dim=axes))(x, axes=(-2, -1))
        W = w_r + 1j * w_i
        X = X * W
        y = (lambda x, s, axes=(-2,-1): torch.fft.irfft2(x, s=s, dim=axes).to(torch.bfloat16))(X, (S, D), axes=(-2, -1))
        return y

    def _B_ref(x, w_gate, w_up, w_down):
        g = _silu(x @ w_gate)
        u = x @ w_up
        return (g * u) @ w_down

    x = A_x
    xn = _layernorm(x, axis=-1)
    s = _A_ref(xn, A_w_r, A_w_i)
    g = _silu(_B_ref(xn, B_w_gate, B_w_up, B_w_down))
    return x + s * g
```

```python
import math, struct
def f2u(f):
    return struct.unpack('<I', struct.pack('<f', f))[0]
class Asm:
    def __init__(self):
        self.L = []
    def __call__(self, s):
        for line in s.strip('\n').split('\n'):
            self.L.append('    ' + line.strip())
    def label(self, name):
        self.L.append(name + ':')
    def raw(self, s):
        self.L.append(s)
    def text(self):
        return '\n'.join(self.L) + '\n'

OFF_SPEC = 0
SZ_SPEC = 257*2048*8
OFF_WT = 0x500000
SZ_WT = 257*2048*4
OFF_XN = 0x800000
SZ_XN = 2048*512*2
OFF_H = 0xA00000
SZ_H = 2048*1792*2
OFF_G = 0x1200000
SZ_G = 2048*512*2

def srd(a, d, base_lo, base_hi, size, add=0):
    if add:
        a(f's_add_u32 s{d}, s{base_lo}, 0x{add:x}')
        a(f's_addc_u32 s{d+1}, s{base_hi}, 0')
    else:
        a(f's_mov_b32 s{d}, s{base_lo}')
        a(f's_mov_b32 s{d+1}, s{base_hi}')
    a(f's_mov_b32 s{d+2}, 0x{size:x}')
    a(f's_mov_b32 s{d+3}, 0x00020000')

def cadd(a, d, x, y):
    a(f'v_add_f32 v{d}, v{x}, v{y}'); a(f'v_add_f32 v{d+1}, v{x+1}, v{y+1}')
def csub(a, d, x, y):
    a(f'v_sub_f32 v{d}, v{x}, v{y}'); a(f'v_sub_f32 v{d+1}, v{x+1}, v{y+1}')
def cadd_rot(a, d, x, y, sgn):
    if sgn > 0:
        a(f'v_sub_f32 v{d}, v{x}, v{y+1}'); a(f'v_add_f32 v{d+1}, v{x+1}, v{y}')
    else:
        a(f'v_add_f32 v{d}, v{x}, v{y+1}'); a(f'v_sub_f32 v{d+1}, v{x+1}, v{y}')

def dft4(a, y, out, U, inv):
    c0, c1, c2, c3 = U, U+2, U+4, U+6
    cadd(a, c0, y[0], y[2]); csub(a, c1, y[0], y[2])
    cadd(a, c2, y[1], y[3]); csub(a, c3, y[1], y[3])
    cadd(a, out[0], c0, c2); csub(a, out[2], c0, c2)
    s = +1 if inv else -1
    cadd_rot(a, out[1], c1, c3, s); cadd_rot(a, out[3], c1, c3, -s)

def r8(a, x, T, U, sc, inv):
    A = [T+2*i for i in range(4)]; B = [T+8+2*i for i in range(4)]
    for i in range(4):
        cadd(a, A[i], x[i], x[i+4]); csub(a, B[i], x[i], x[i+4])
    t = U
    b1, b3 = B[1], B[3]
    if not inv:
        a(f'v_add_f32 v{t}, v{b1}, v{b1+1}'); a(f'v_sub_f32 v{t+1}, v{b1+1}, v{b1}')
        a(f'v_mul_f32 v{b1}, s{sc}, v{t}'); a(f'v_mul_f32 v{b1+1}, s{sc}, v{t+1}')
        a(f'v_sub_f32 v{t}, v{b3+1}, v{b3}'); a(f'v_add_f32 v{t+1}, v{b3}, v{b3+1}')
        a(f'v_mul_f32 v{b3}, s{sc}, v{t}'); a(f'v_mul_f32 v{b3+1}, s{sc}, v{t+1}')
        a(f'v_sub_f32 v{b3+1}, 0, v{b3+1}')
    else:
        a(f'v_sub_f32 v{t}, v{b1}, v{b1+1}'); a(f'v_add_f32 v{t+1}, v{b1}, v{b1+1}')
        a(f'v_mul_f32 v{b1}, s{sc}, v{t}'); a(f'v_mul_f32 v{b1+1}, s{sc}, v{t+1}')
        a(f'v_add_f32 v{t}, v{b3}, v{b3+1}'); a(f'v_sub_f32 v{t+1}, v{b3}, v{b3+1}')
        a(f'v_mul_f32 v{b3}, s{sc}, v{t}'); a(f'v_mul_f32 v{b3+1}, s{sc}, v{t+1}')
        a(f'v_sub_f32 v{b3}, 0, v{b3}')
    b2 = B[2]
    if not inv:
        a(f'v_sub_f32 v{t}, 0, v{b2}'); a(f'v_mov_b32 v{b2}, v{b2+1}'); a(f'v_mov_b32 v{b2+1}, v{t}')
    else:
        a(f'v_sub_f32 v{t}, 0, v{b2+1}'); a(f'v_mov_b32 v{b2+1}, v{b2}'); a(f'v_mov_b32 v{b2}, v{t}')
    dft4(a, A, [x[0], x[2], x[4], x[6]], U, inv)
    dft4(a, B, [x[1], x[3], x[5], x[7]], U, inv)

def cmul_tw(a, x, w, t, conj):
    a(f'v_mul_f32 v{t}, v{x+1}, v{w+1}')
    a(f'v_mul_f32 v{t+1}, v{x}, v{w+1}')
    if not conj:
        a(f'v_fma_f32 v{x}, v{x}, v{w}, -v{t}')
        a(f'v_fma_f32 v{x+1}, v{x+1}, v{w}, v{t+1}')
    else:
        a(f'v_fma_f32 v{x}, v{x}, v{w}, v{t}')
        a(f'v_fma_f32 v{x+1}, v{x+1}, v{w}, -v{t+1}')

def sincos(a, w, ang):
    a(f'v_cos_f32 v{w}, v{ang}')
    a(f'v_sin_f32 v{w+1}, v{ang}')

def allreduce_add(a, v, t):
    a('s_nop 1')
    a(f'v_add_f32_dpp v{v}, v{v}, v{v} quad_perm:[1,0,3,2] row_mask:0xf bank_mask:0xf')
    a('s_nop 1')
    a(f'v_add_f32_dpp v{v}, v{v}, v{v} quad_perm:[2,3,0,1] row_mask:0xf bank_mask:0xf')
    a('s_nop 1')
    a(f'v_add_f32_dpp v{v}, v{v}, v{v} row_half_mirror row_mask:0xf bank_mask:0xf')
    a('s_nop 1')
    a(f'v_add_f32_dpp v{v}, v{v}, v{v} row_mirror row_mask:0xf bank_mask:0xf')
    a(f'v_mov_b32 v{t}, v{v}')
    a('s_nop 1')
    a(f'v_permlane16_swap_b32 v{v}, v{t}')
    a(f'v_add_f32 v{v}, v{v}, v{t}')
    a(f'v_mov_b32 v{t}, v{v}')
    a('s_nop 1')
    a(f'v_permlane32_swap_b32 v{v}, v{t}')
    a(f'v_add_f32 v{v}, v{v}, v{t}')

def round_bf16_pair(a, x0, x1, t):
    a(f'v_cvt_pk_bf16_f32 v{t}, v{x0}, v{x1}')
    a(f'v_lshlrev_b32 v{x0}, 16, v{t}')
    a(f'v_and_b32 v{x1}, 0xffff0000, v{t}')
def round_bf16(a, x, t):
    a(f'v_cvt_pk_bf16_f32 v{t}, v{x}, v{x}')
    a(f'v_lshlrev_b32 v{x}, 16, v{t}')

def kernel_desc(name, vgpr, agpr=0, sgpr=100):
    acc = (vgpr + 3)//4*4
    tot = acc + agpr
    return f""".amdhsa_kernel {name}
  .amdhsa_next_free_vgpr {tot}
  .amdhsa_next_free_sgpr {sgpr}
  .amdhsa_accum_offset {acc}
  .amdhsa_group_segment_fixed_size 0
  .amdhsa_kernarg_size 80
  .amdhsa_user_sgpr_count 2
  .amdhsa_user_sgpr_kernarg_segment_ptr 1
  .amdhsa_system_sgpr_workgroup_id_x 1
.end_amdhsa_kernel
"""
```

```python
from common import *
QB = 18432
def cols_body(a, colreg='s2', done='L_cols_done'):
    a('s_load_dwordx2 s[10:11], s[0:1], 72')
    a(f's_mov_b32 s36, 0x{f2u(math.sqrt(0.5)):x}')
    a(f's_lshl_b32 s40, {colreg}, 14\ns_add_u32 s41, s40, 4096\ns_add_u32 s42, s40, 8192\ns_add_u32 s43, s40, 12288')
    a(f's_lshl_b32 s44, {colreg}, 13\ns_add_u32 s45, s44, 4096')
    a('v_lshlrev_b32 v104, 3, v0\nv_lshlrev_b32 v103, 2, v0')
    a('s_waitcnt lgkmcnt(0)')
    srd(a, 24, 10, 11, SZ_SPEC, OFF_SPEC)
    srd(a, 28, 10, 11, SZ_WT, OFF_WT)
    X0 = 8; X = [X0+2*r for r in range(8)]
    T, U = 24, 40
    TW1, TW2, TW3 = 48, 64, 80
    WV = 96; tmp = 116
    SO = ['s40', 's41', 's42', 's43']
    for r in range(8):
        a(f'buffer_load_dwordx2 v[{X[r]}:{X[r]+1}], v104, s[24:27], {SO[r//2]} offen offset:{(r%2)*2048} sc0 sc1')
    for r in range(8):
        a(f'buffer_load_dword v{WV+r}, v103, s[28:31], {"s44" if r < 4 else "s45"} offen offset:{(r%4)*1024}')
    t = tmp
    a(f'v_lshrrev_b32 v{t}, 5, v0\nv_cvt_f32_u32 v{t}, v{t}\nv_mul_f32 v{t}, 0x{f2u(-1/64):x}, v{t}')
    for k0 in range(1, 8):
        a(f'v_mul_f32 v{t+1}, 0x{f2u(float(k0)):x}, v{t}'); sincos(a, TW1+2*k0, t+1)
    a(f'v_lshrrev_b32 v{t}, 5, v0\nv_bfe_u32 v{t+1}, v0, 2, 3\nv_mul_u32_u24 v{t+2}, v{t}, v{t+1}')
    a(f'v_cvt_f32_u32 v{t+2}, v{t+2}\nv_cvt_f32_u32 v{t}, v{t+1}')
    a(f'v_mul_f32 v{t+2}, 0x{f2u(-1/512):x}, v{t+2}\nv_mul_f32 v{t}, 0x{f2u(-1/64):x}, v{t}')
    for k1 in range(8):
        a(f'v_mov_b32 v{t+3}, 0x{f2u(float(k1)):x}\nv_fma_f32 v{t+1}, v{t}, v{t+3}, v{t+2}'); sincos(a, TW2+2*k1, t+1)
    a(f'v_and_b32 v{t}, 3, v0\nv_lshrrev_b32 v{t+1}, 2, v0\nv_mul_u32_u24 v{t+2}, v{t}, v{t+1}')
    a(f'v_cvt_f32_u32 v{t+2}, v{t+2}\nv_cvt_f32_u32 v{t}, v{t}')
    a(f'v_mul_f32 v{t+2}, 0x{f2u(-1/2048):x}, v{t+2}\nv_mul_f32 v{t}, 0x{f2u(-1/32):x}, v{t}')
    for k2 in range(8):
        a(f'v_mov_b32 v{t+3}, 0x{f2u(float(k2)):x}\nv_fma_f32 v{t+1}, v{t}, v{t+3}, v{t+2}'); sincos(a, TW3+2*k2, t+1)
    a(f'v_lshrrev_b32 v{t}, 5, v0\nv_and_b32 v{t+1}, 31, v0')
    a(f'v_lshl_add_u32 v{t+2}, v{t}, 8, v{t+1}\nv_lshlrev_b32 v105, 3, v{t+2}')
    a(f'v_mul_u32_u24 v{t+2}, 36, v{t}\nv_add_u32 v{t+2}, v{t+2}, v{t+1}\nv_lshlrev_b32 v106, 3, v{t+2}')
    a(f'v_mul_u32_u24 v{t+2}, 288, v{t}\nv_bfe_u32 v{t+1}, v0, 2, 3\nv_mul_u32_u24 v{t+3}, 36, v{t+1}\nv_add_u32 v{t+2}, v{t+2}, v{t+3}')
    a(f'v_and_b32 v{t+1}, 3, v0\nv_add_u32 v{t+2}, v{t+2}, v{t+1}\nv_lshlrev_b32 v107, 3, v{t+2}')
    a('v_lshlrev_b32 v108, 5, v0')
    def xch(wr, rd):
        for (op, (ar, st, base, wide)) in (('write', wr), ('read', rd)):
            if wide:
                for g in range(2):
                    for h in range(2):
                        r0 = X0+8*g+4*h
                        off = base+8192*g+16*h
                        if op == 'write': a(f'ds_write_b128 v{ar}, v[{r0}:{r0+3}] offset:{off}')
                        else: a(f'ds_read_b128 v[{r0}:{r0+3}], v{ar} offset:{off}')
            else:
                for r in range(8):
                    if op == 'write': a(f'ds_write_b64 v{ar}, v[{X[r]}:{X[r]+1}] offset:{base+r*st}')
                    else: a(f'ds_read_b64 v[{X[r]}:{X[r]+1}], v{ar} offset:{base+r*st}')
            if op == 'write': a('s_waitcnt lgkmcnt(0)\ns_barrier')
        a('s_waitcnt lgkmcnt(0)')
    def tw(TW, start, conj):
        for r in range(start, 8): cmul_tw(a, X[r], TW+2*r, tmp, conj)
    a('s_waitcnt vmcnt(8)')
    r8(a, X, T, U, 36, False); tw(TW1, 1, False)
    xch((104, 2048, 0, 0), (105, 256, 0, 0))
    r8(a, X, T, U, 36, False); tw(TW2, 0, False)
    xch((106, 2304, QB, 0), (107, 32, QB, 0))
    r8(a, X, T, U, 36, False); tw(TW3, 0, False)
    xch((104, 2048, 0, 0), (108, 0, 0, 1))
    for g in range(2):
        dft4(a, X[4*g:4*g+4], X[4*g:4*g+4], U, False)
    a('s_waitcnt vmcnt(0)')
    for rho in range(8):
        p = X[4*(rho & 1) + (rho >> 1)]
        a(f'v_lshlrev_b32 v{t+2}, 16, v{WV+rho}\nv_and_b32 v{t+3}, 0xffff0000, v{WV+rho}')
        a(f'v_mul_f32 v{t+2}, 0x{f2u(2.0**-21):x}, v{t+2}\nv_mul_f32 v{t+3}, 0x{f2u(2.0**-21):x}, v{t+3}')
        cmul_tw(a, p, t+2, tmp, False)
    for g in range(2):
        dft4(a, X[4*g:4*g+4], X[4*g:4*g+4], U, True)
    xch((108, 0, QB, 1), (104, 2048, QB, 0))
    tw(TW3, 0, True); r8(a, X, T, U, 36, True)
    xch((107, 32, 0, 0), (106, 2304, 0, 0))
    tw(TW2, 0, True); r8(a, X, T, U, 36, True)
    xch((105, 256, QB, 0), (104, 2048, QB, 0))
    tw(TW1, 1, True); r8(a, X, T, U, 36, True)
    for r in range(8):
        a(f'buffer_store_dwordx2 v[{X[r]}:{X[r]+1}], v104, s[24:27], {SO[r//2]} offen offset:{(r%2)*2048} sc0 sc1')

def gen_cols():
    a = Asm()
    N = 'cols_kernel'
    a.raw(f'.globl {N}\n.p2align 8\n.type {N},@function\n{N}:')
    a('s_cmp_ge_u32 s2, 257\ns_cbranch_scc1 L_cols_done')
    cols_body(a)
    a.label('L_cols_done')
    a('s_endpgm')
    return a.text(), kernel_desc(N, 124), f'; @launch kernel={N} grid=(257,1,1) block=(256,1,1) lds={2*QB}'
```

```python
from common import *
from k_rows import tw_rows
def gen_final():
    a = Asm()
    N = 'final_kernel'
    a.raw(f'.globl {N}\n.p2align 8\n.type {N},@function\n{N}:')
    a('s_cmp_ge_u32 s2, 256\ns_cbranch_scc1 L_fin_done')
    a('s_load_dwordx2 s[4:5], s[0:1], 0\ns_load_dwordx2 s[6:7], s[0:1], 56\ns_load_dwordx2 s[10:11], s[0:1], 72')
    a('v_and_b32 v1, 63, v0\nv_lshrrev_b32 v2, 6, v0')
    a('s_lshl_b32 s40, s2, 3')
    a('v_lshlrev_b32 v3, 1, v2\nv_add_u32 v3, s40, v3')
    a('v_lshlrev_b32 v4, 10, v3\nv_lshl_add_u32 v4, v1, 1, v4')
    a('v_lshlrev_b32 v5, 14, v1\nv_lshl_add_u32 v5, v3, 3, v5')
    a('v_sub_u32 v6, 64, v1\nv_lshlrev_b32 v6, 14, v6\nv_lshl_add_u32 v6, v3, 3, v6')
    a(f's_mov_b32 s36, 0x{f2u(math.sqrt(0.5)):x}')
    for r in range(4): a(f's_mov_b32 s{44+r}, 0x{r*64*16384:x}')
    a('s_waitcnt lgkmcnt(0)')
    srd(a, 12, 4, 5, 2048*512*2)
    srd(a, 16, 6, 7, 2048*512*2)
    srd(a, 24, 10, 11, SZ_SPEC, OFF_SPEC)
    srd(a, 32, 10, 11, SZ_G, OFF_G)
    D = 8; YL = 24; T = 24; U = 40; TW1 = 68; TW2 = 84; tmp = 100; XL = 132; GL = 148
    for r in range(8):
        vo, so = ('v5', 44+r) if r < 4 else ('v6', 44+7-r)
        a(f'buffer_load_dwordx4 v[{YL+4*r}:{YL+4*r+3}], {vo}, s[24:27], s{so} offen')
    for r in range(8):
        a(f'buffer_load_ushort v{XL+2*r}, v4, s[12:15], 0 offen offset:{r*128}')
        a(f'buffer_load_ushort v{XL+2*r+1}, v4, s[12:15], 0 offen offset:{1024+r*128}')
    for r in range(8):
        a(f'buffer_load_ushort v{GL+2*r}, v4, s[32:35], 0 offen offset:{r*128}')
        a(f'buffer_load_ushort v{GL+2*r+1}, v4, s[32:35], 0 offen offset:{1024+r*128}')
    tw_rows(a, 1, TW1, TW2, tmp)
    a('v_mul_u32_u24 v125, 5120, v2')
    a('v_lshl_add_u32 v120, v1, 3, v125')
    a('v_lshrrev_b32 v126, 3, v1\nv_and_b32 v127, 7, v1')
    a('v_mul_u32_u24 v128, 72, v126\nv_add_u32 v128, v128, v127\nv_lshl_add_u32 v121, v128, 3, v125')
    a('v_mul_u32_u24 v128, 9, v126\nv_add_u32 v128, v128, v127\nv_lshl_add_u32 v122, v128, 3, v125')
    a('v_mul_u32_u24 v128, 72, v126\nv_mul_u32_u24 v129, 9, v127\nv_add_u32 v128, v128, v129\nv_lshl_add_u32 v123, v128, 3, v125')
    a('v_cmp_eq_u32 vcc, 0, v1\nv_mov_b32 v129, 0')
    a('s_waitcnt vmcnt(32)')
    X = [D+2*r for r in range(8)]
    for r in (0, 4):
        a(f'v_cndmask_b32 v{YL+4*r+1}, v{YL+4*r+1}, v129, vcc\nv_cndmask_b32 v{YL+4*r+3}, v{YL+4*r+3}, v129, vcc')
    for r in range(8):
        y = YL+4*r
        if r < 4:
            a(f'v_sub_f32 v{X[r]}, v{y}, v{y+3}\nv_add_f32 v{X[r]+1}, v{y+1}, v{y+2}')
        else:
            a(f'v_add_f32 v{X[r]}, v{y}, v{y+3}\nv_sub_f32 v{X[r]+1}, v{y+2}, v{y+1}')
    r8(a, X, T, U, 36, True)
    for n0 in range(8): a(f'ds_write_b64 v123, v[{X[n0]}:{X[n0]+1}] offset:{n0*8}')
    a('s_waitcnt lgkmcnt(0)')
    for k1 in range(8): a(f'ds_read_b64 v[{X[k1]}:{X[k1]+1}], v122 offset:{k1*576}')
    a('s_waitcnt lgkmcnt(0)')
    for k1 in range(8): cmul_tw(a, X[k1], TW2+2*k1, tmp+4, True)
    r8(a, X, T, U, 36, True)
    for n1 in range(8): a(f'ds_write_b64 v121, v[{X[n1]}:{X[n1]+1}] offset:{n1*64}')
    a('s_waitcnt lgkmcnt(0)')
    for k0 in range(8): a(f'ds_read_b64 v[{X[k0]}:{X[k0]+1}], v120 offset:{k0*576}')
    a('s_waitcnt lgkmcnt(0)')
    for k0 in range(1, 8): cmul_tw(a, X[k0], TW1+2*k0, tmp+4, True)
    r8(a, X, T, U, 36, True)
    a('s_waitcnt vmcnt(0)')
    for r in range(8):
        for o in range(2):
            a(f'v_lshlrev_b32 v{XL+2*r+o}, 16, v{XL+2*r+o}\nv_lshlrev_b32 v{GL+2*r+o}, 16, v{GL+2*r+o}')
        round_bf16_pair(a, X[r], X[r]+1, tmp)
        a(f'v_mul_f32 v{X[r]}, v{X[r]}, v{GL+2*r}\nv_mul_f32 v{X[r]+1}, v{X[r]+1}, v{GL+2*r+1}')
        round_bf16_pair(a, X[r], X[r]+1, tmp)
        a(f'v_add_f32 v{X[r]}, v{X[r]}, v{XL+2*r}\nv_add_f32 v{X[r]+1}, v{X[r]+1}, v{XL+2*r+1}')
        a(f'v_cvt_pk_bf16_f32 v{X[r]}, v{X[r]}, v{X[r]+1}')
        a(f'buffer_store_short v{X[r]}, v4, s[16:19], 0 offen offset:{r*128}')
        a(f'buffer_store_short_d16_hi v{X[r]}, v4, s[16:19], 0 offen offset:{1024+r*128}')
    a.label('L_fin_done')
    a('s_endpgm')
    return a.text(), kernel_desc(N, 164), f'; @launch kernel={N} grid=(256,1,1) block=(256,1,1) lds={4*5120}'
```

```python
from common import *
def weave(a, mf, oth):
    n = len(mf); k = 0
    for i, m in enumerate(mf):
        a(m)
        tgt = (len(oth)*(i+1) + n - 1)//n
        while k < min(tgt, len(oth)):
            for l in oth[k]: a(l)
            k += 1
    while k < len(oth):
        for l in oth[k]: a(l)
        k += 1

def silu_pair(a, x0, x1, t):
    a(f'v_mul_f32 v{t}, 0x{f2u(-1.4426950408889634):x}, v{x0}\nv_mul_f32 v{t+1}, 0x{f2u(-1.4426950408889634):x}, v{x1}')
    a(f'v_exp_f32 v{t}, v{t}\nv_exp_f32 v{t+1}, v{t+1}\ns_nop 0')
    a(f'v_add_f32 v{t}, 1.0, v{t}\nv_add_f32 v{t+1}, 1.0, v{t+1}')
    a(f'v_rcp_f32 v{t}, v{t}\nv_rcp_f32 v{t+1}, v{t+1}\ns_nop 0')
    a(f'v_mul_f32 v{x0}, v{x0}, v{t}\nv_mul_f32 v{x1}, v{x1}, v{t+1}')

def gemm_body(a, c):
    BM, NP, K, NS = c['BM'], c['NP'], c['K'], c['NS']
    pA, pB = c['pitchA'], c['pitchB']
    MT = c['MT']; frags = c['frags']; units = c['units']
    NSTG = K//64; SA = BM*128; SB = 8192; SS = SA + NP*SB
    ACC = c['ACC']; AF = c['AF']; BF = c['BF']; NFU = max(len(u) for u in units)
    a('v_and_b32 v1, 63, v0\nv_lshrrev_b32 v2, 6, v0')
    a('s_nop 0\nv_readfirstlane_b32 s50, v2')
    a('s_nop 3\ns_lshl_b32 s51, s50, 10')
    t = c['tmp']
    a(f'v_lshrrev_b32 v{t}, 3, v1\nv_and_b32 v{t+1}, 7, v1\nv_xor_b32 v{t+2}, v{t+1}, v{t}')
    a(f'v_lshl_add_u32 v{t+3}, v2, 3, v{t}')
    a(f'v_mul_u32_u24 v3, 0x{pA:x}, v{t+3}\nv_lshl_add_u32 v3, v{t+2}, 4, v3')
    a(f'v_and_b32 v{t+2}, 2, v{t}\nv_and_b32 v{t+4}, 1, v2\nv_lshl_or_b32 v{t+2}, v{t+4}, 2, v{t+2}\nv_xor_b32 v{t+2}, v{t+1}, v{t+2}')
    a(f'v_mul_u32_u24 v4, 0x{pB:x}, v{t+3}\nv_lshl_add_u32 v4, v{t+2}, 4, v4')
    a(f'v_lshrrev_b32 v{t+5}, 1, v2\nv_and_b32 v{t+6}, 1, v2')
    a(f'v_and_b32 v{t}, 15, v1\nv_mul_u32_u24 v{t+1}, {MT*16}, v{t+5}\nv_add_u32 v{t}, v{t}, v{t+1}\nv_lshlrev_b32 v{t}, 7, v{t}')
    a(f'v_lshrrev_b32 v{t+1}, 4, v1\nv_and_b32 v{t+2}, 7, v1\nv_xor_b32 v{t+1}, v{t+1}, v{t+2}\nv_lshl_add_u32 v5, v{t+1}, 4, v{t}')
    a('v_xor_b32 v6, 64, v5')
    nts = c['nts']
    a(f'v_lshrrev_b32 v{t}, 4, v1\nv_bfe_u32 v{t+1}, v1, 2, 2\nv_and_b32 v{t+2}, 3, v1')
    a(f'v_lshl_add_u32 v{t+3}, v{t}, 3, v{t+1}\nv_lshlrev_b32 v{t+3}, 7, v{t+3}')
    a(f'v_and_b32 v{t+4}, 2, v{t+1}\nv_and_b32 v{t}, 1, v{t}\nv_lshl_or_b32 v{t+4}, v{t}, 2, v{t+4}')
    a(f'v_and_b32 v{t}, 1, v{t+2}\nv_lshl_add_u32 v{t+3}, v{t}, 3, v{t+3}')
    a(f'v_lshrrev_b32 v{t+2}, 1, v{t+2}')
    a(f'v_add_u32 v{t+3}, 0x{SA:x}, v{t+3}')
    if c['wn_panel']:
        a(f'v_lshl_add_u32 v{t+3}, v{t+6}, 13, v{t+3}')
    for ts in range(nts):
        if c['wn_panel']: a(f'v_mov_b32 v{t+7}, {2*ts}')
        else: a(f'v_lshlrev_b32 v{t+7}, 2, v{t+6}\nv_add_u32 v{t+7}, {2*ts}, v{t+7}')
        a(f'v_add_u32 v{t+7}, v{t+7}, v{t+2}\nv_xor_b32 v{t+7}, v{t+7}, v{t+4}\nv_lshl_add_u32 v{8+ts}, v{t+7}, 4, v{t+3}')
    NAD = 2 + nts
    base_regs = [5, 6] + [8+i for i in range(nts)]
    R0 = c['ADDR']
    for b in range(NS):
        for i, r in enumerate(base_regs):
            a(f'v_add_u32 v{R0+b*NAD+i}, 0x{b*SS:x}, v{r}')
    nacc = MT*len(frags)*4
    for i in range(nacc): a(f'v_mov_b32 v{ACC+i}, 0')
    def dma(s):
        L = []
        b = s % NS
        for j in range(BM//32):
            L.append([f's_add_u32 m0, s51, 0x{b*SS + j*4096:x}', f's_add_u32 s52, {c["soffA"]}, 0x{s*128 + 32*j*pA:x}',
                      f'buffer_load_dwordx4 v3, s[12:15], s52 offen lds'])
        for p in range(NP):
            for j in range(2):
                sr = c['bsrd'][p]
                L.append([f's_add_u32 m0, s51, 0x{b*SS + SA + p*SB + j*4096:x}',
                          f's_add_u32 s52, {c["soffB"]}, 0x{(s*64 + 32*j)*pB + c["bcol"][p]:x}',
                          f'buffer_load_dwordx4 v4, s[{sr}:{sr+3}], s52 offen lds'])
        return L
    ND = BM//32 + 2*NP
    import os
    VW = 0 if os.environ.get('VW0') else ND*(NS-2)
    seq = [(s, u, ui) for s in range(NSTG) for u in range(2) for ui in range(len(units))]
    def reads(i):
        s, u, ui = seq[i]; b = s % NS; L = []
        if ui == 0:
            for mt in range(MT):
                r = AF + u*MT*4 + mt*4
                L.append([f'ds_read_b128 v[{r}:{r+3}], v{R0+b*NAD+u} offset:{mt*2048}'])
        for jj, fid in enumerate(units[ui]):
            P, ts = frags[fid]
            r = BF + (i % 2)*NFU*4 + jj*4
            for h in range(2):
                L.append([f'ds_read_b64_tr_b16 v[{r+2*h}:{r+2*h+1}], v{R0+b*NAD+2+ts} offset:{P*c["pstride"] + (32*u+4*h)*128}'])
        return L
    def mfmas(i):
        s, u, ui = seq[i]; L = []
        for jj, fid in enumerate(units[ui]):
            rb = BF + (i % 2)*NFU*4 + jj*4
            for mt in range(MT):
                ra = AF + u*MT*4 + mt*4; d = ACC + (fid*MT + mt)*4
                L.append(f'v_mfma_f32_16x16x32_bf16 v[{d}:{d+3}], v[{rb}:{rb+3}], v[{ra}:{ra+3}], v[{d}:{d+3}]')
        return L
    for s in range(NS-1):
        for g in dma(s):
            for l in g: a(l)
    a(f's_waitcnt vmcnt({VW})\ns_barrier')
    if NS-1 < NSTG:
        for g in dma(NS-1):
            for l in g: a(l)
    for g in reads(0): a(g[0])
    for i in range(len(seq)):
        s, u, ui = seq[i]
        a('s_waitcnt lgkmcnt(0)')
        oth = []
        if u == 1 and ui == len(units)-1 and s+1 < NSTG:
            a(f's_waitcnt vmcnt({min(VW, ND*(min(NSTG-1, s+NS-1) - (s+1)))})\ns_barrier')
            if s+NS < NSTG: oth += dma(s+NS)
        if i+1 < len(seq): oth = reads(i+1) + oth
        weave(a, mfmas(i), oth)
    a('s_nop 7\ns_nop 7')

def gen_gemm1():
    a = Asm(); N = 'gemm1_kernel'
    a.raw(f'.globl {N}\n.p2align 8\n.type {N},@function\n{N}:')
    a('s_cmp_ge_u32 s2, 224\ns_cbranch_scc1 L_g1_done')
    gemm1_body(a, 's2')
    a.label('L_g1_done'); a('s_endpgm')
    return a.text(), kernel_desc(N, 256), f'; @launch kernel={N} grid=(224,1,1) block=(256,1,1) lds={2*49152}'

def gemm1_body(a, wg):
    a('s_load_dwordx2 s[10:11], s[0:1], 72\ns_load_dwordx2 s[4:5], s[0:1], 32\ns_load_dwordx2 s[6:7], s[0:1], 40')
    a(f's_and_b32 s46, {wg}, 15\ns_lshr_b32 s47, {wg}, 4')
    a('s_lshl_b32 s48, s46, 17\ns_lshl_b32 s49, s47, 8')
    a('s_waitcnt lgkmcnt(0)')
    srd(a, 12, 10, 11, SZ_XN, OFF_XN); srd(a, 16, 4, 5, 512*3584); srd(a, 20, 6, 7, 512*3584); srd(a, 24, 10, 11, SZ_H, OFF_H)
    c = dict(BM=128, NP=4, K=512, NS=2, pitchA=1024, pitchB=3584, MT=4, frags=[(P, t) for P in range(2) for t in range(4)],
             units=[[0, 1, 2, 3], [4, 5, 6, 7]], ACC=128, AF=64, BF=96, tmp=40, nts=4, wn_panel=True, ADDR=16,
             soffA='s48', soffB='s49', bsrd=[16, 16, 20, 20], bcol=[0, 128, 0, 128], pstride=16384)
    gemm_body(a, c)
    a('v_and_b32 v40, 15, v1\nv_lshrrev_b32 v41, 1, v2\nv_lshl_add_u32 v40, v41, 6, v40\nv_mul_u32_u24 v40, 0xe00, v40')
    a('v_and_b32 v41, 1, v2\nv_lshlrev_b32 v41, 7, v41\nv_lshrrev_b32 v42, 4, v1\nv_lshl_add_u32 v41, v42, 3, v41\nv_add_u32 v40, v40, v41')
    a('s_mul_i32 s52, s46, 0x70000\ns_add_u32 s52, s52, s49')
    for mt in range(4):
        for t in range(4):
            G = 128 + (t*4+mt)*4; Uu = 128 + ((4+t)*4+mt)*4
            for h in range(2):
                g0 = G+2*h; u0 = Uu+2*h
                round_bf16_pair(a, g0, g0+1, 44)
                silu_pair(a, g0, g0+1, 44)
                round_bf16_pair(a, g0, g0+1, 44)
                round_bf16_pair(a, u0, u0+1, 44)
                a(f'v_mul_f32 v{g0}, v{g0}, v{u0}\nv_mul_f32 v{g0+1}, v{g0+1}, v{u0+1}')
                a(f'v_cvt_pk_bf16_f32 v{G+h}, v{g0}, v{g0+1}')
            a(f's_add_u32 s53, s52, 0x{mt*16*3584 + t*32:x}')
            a(f'buffer_store_dwordx2 v[{G}:{G+1}], v40, s[24:27], s53 offen')

def gen_gemm2():
    a = Asm(); N = 'gemm2_kernel'
    a.raw(f'.globl {N}\n.p2align 8\n.type {N},@function\n{N}:')
    a('s_cmp_ge_u32 s2, 256\ns_cbranch_scc1 L_g2_done')
    a('s_load_dwordx2 s[10:11], s[0:1], 72\ns_load_dwordx2 s[4:5], s[0:1], 48')
    a('s_and_b32 s46, s2, 31\ns_lshr_b32 s47, s2, 5')
    a('s_mul_i32 s48, s46, 0x38000\ns_lshl_b32 s49, s47, 7')
    a('s_waitcnt lgkmcnt(0)')
    srd(a, 12, 10, 11, SZ_H, OFF_H); srd(a, 16, 4, 5, 1792*1024); srd(a, 24, 10, 11, SZ_G, OFF_G)
    NS = 4
    c = dict(BM=64, NP=1, K=1792, NS=NS, pitchA=3584, pitchB=1024, MT=2, frags=[(0, 0), (0, 1)],
             units=[[0, 1]], ACC=96, AF=64, BF=80, tmp=40, nts=2, wn_panel=False, ADDR=16,
             soffA='s48', soffB='s49', bsrd=[16], bcol=[0], pstride=0)
    gemm_body(a, c)
    a('v_and_b32 v40, 15, v1\nv_lshrrev_b32 v41, 1, v2\nv_lshl_add_u32 v40, v41, 5, v40\nv_lshlrev_b32 v40, 10, v40')
    a('v_and_b32 v41, 1, v2\nv_lshlrev_b32 v41, 6, v41\nv_lshrrev_b32 v42, 4, v1\nv_lshl_add_u32 v41, v42, 3, v41\nv_add_u32 v40, v40, v41')
    a('s_lshl_b32 s52, s46, 16\ns_add_u32 s52, s52, s49')
    for fid in range(2):
        for mt in range(2):
            G = 96 + (fid*2+mt)*4
            for h in range(2):
                g0 = G+2*h
                round_bf16_pair(a, g0, g0+1, 44)
                silu_pair(a, g0, g0+1, 44)
                a(f'v_cvt_pk_bf16_f32 v{G+h}, v{g0}, v{g0+1}')
            a(f's_add_u32 s53, s52, 0x{mt*16*1024 + fid*32:x}')
            a(f'buffer_store_dwordx2 v[{G}:{G+1}], v40, s[24:27], s53 offen')
    a.label('L_g2_done'); a('s_endpgm')
    return a.text(), kernel_desc(N, 112), f'; @launch kernel={N} grid=(256,1,1) block=(256,1,1) lds={NS*16384}'
```

```python
from common import *
def tw_rows(a, lane, TW1, TW2, t):
    a(f'v_lshrrev_b32 v{t}, 3, v{lane}')
    a(f'v_cvt_f32_u32 v{t}, v{t}')
    a(f'v_mul_f32 v{t}, 0x{f2u(-1/64):x}, v{t}')
    for k0 in range(1, 8):
        a(f'v_mul_f32 v{t+1}, 0x{f2u(float(k0)):x}, v{t}')
        sincos(a, TW1+2*k0, t+1)
    a(f'v_and_b32 v{t}, 7, v{lane}')
    a(f'v_lshrrev_b32 v{t+1}, 3, v{lane}')
    a(f'v_mul_u32_u24 v{t+2}, v{t}, v{t+1}')
    a(f'v_cvt_f32_u32 v{t+2}, v{t+2}')
    a(f'v_cvt_f32_u32 v{t}, v{t}')
    a(f'v_mul_f32 v{t+2}, 0x{f2u(-1/512):x}, v{t+2}')
    a(f'v_mul_f32 v{t}, 0x{f2u(-1/64):x}, v{t}')
    for k1 in range(8):
        a(f'v_mov_b32 v{t+3}, 0x{f2u(float(k1)):x}')
        a(f'v_fma_f32 v{t+1}, v{t}, v{t+3}, v{t+2}')
        sincos(a, TW2+2*k1, t+1)

def gen_rows():
    a = Asm()
    N = 'rows_kernel'
    a.raw(f'.globl {N}\n.p2align 8\n.type {N},@function\n{N}:')
    a(f's_cmp_ge_u32 s2, 256\ns_cbranch_scc1 L_rows_done')
    a('s_load_dwordx2 s[4:5], s[0:1], 0\ns_load_dwordx2 s[6:7], s[0:1], 8\ns_load_dwordx2 s[8:9], s[0:1], 16\ns_load_dwordx2 s[10:11], s[0:1], 72')
    a('v_and_b32 v1, 63, v0\nv_lshrrev_b32 v2, 6, v0')
    a('s_lshl_b32 s40, s2, 3')
    a('v_lshlrev_b32 v3, 1, v2\nv_add_u32 v3, s40, v3')
    a('v_lshlrev_b32 v4, 10, v3\nv_lshl_add_u32 v4, v1, 1, v4')
    a('v_mul_u32_u24 v5, 0x202, v3\nv_lshl_add_u32 v5, v1, 1, v5')
    a(f's_mov_b32 s36, 0x{f2u(math.sqrt(0.5)):x}')
    a('s_waitcnt lgkmcnt(0)')
    srd(a, 12, 4, 5, 2048*512*2)
    srd(a, 16, 6, 7, 2048*257*2)
    srd(a, 20, 8, 9, 2048*257*2)
    srd(a, 24, 10, 11, SZ_SPEC, OFF_SPEC)
    srd(a, 28, 10, 11, SZ_WT, OFF_WT)
    srd(a, 32, 10, 11, SZ_XN, OFF_XN)
    D = 8
    WL = 24
    T = 44; U = 60
    TW1 = 68; TW2 = 84
    tmp = 100
    for r in range(8):
        a(f'buffer_load_ushort v{D+2*r}, v4, s[12:15], 0 offen offset:{r*128}')
        a(f'buffer_load_ushort v{D+2*r+1}, v4, s[12:15], 0 offen offset:{1024+r*128}')
    for r in range(5):
        a(f'buffer_load_ushort v{WL+4*r}, v5, s[16:19], 0 offen offset:{r*128}')
        a(f'buffer_load_ushort v{WL+4*r+1}, v5, s[20:23], 0 offen offset:{r*128}')
        a(f'buffer_load_ushort v{WL+4*r+2}, v5, s[16:19], 0 offen offset:{514+r*128}')
        a(f'buffer_load_ushort v{WL+4*r+3}, v5, s[20:23], 0 offen offset:{514+r*128}')
    tw_rows(a, 1, TW1, TW2, tmp)
    WB = 104
    a('v_mul_u32_u24 v125, 5120, v2')
    a('v_lshl_add_u32 v120, v1, 3, v125')
    a('v_lshrrev_b32 v126, 3, v1\nv_and_b32 v127, 7, v1')
    a('v_mul_u32_u24 v128, 72, v126\nv_add_u32 v128, v128, v127\nv_lshl_add_u32 v121, v128, 3, v125')
    a('v_mul_u32_u24 v128, 9, v126\nv_add_u32 v128, v128, v127\nv_lshl_add_u32 v122, v128, 3, v125')
    a('v_mul_u32_u24 v128, 72, v126\nv_mul_u32_u24 v129, 9, v127\nv_add_u32 v128, v128, v129\nv_lshl_add_u32 v123, v128, 3, v125')
    a('v_sub_u32 v128, 64, v1\nv_lshl_add_u32 v124, v128, 3, v125')
    a('s_waitcnt vmcnt(20)')
    for i in range(16):
        a(f'v_lshlrev_b32 v{D+i}, 16, v{D+i}')
    S0, S1 = tmp, tmp+1
    Q0, Q1 = tmp+2, tmp+3
    for (s, o) in ((S0, 0), (S1, 1)):
        a(f'v_add_f32 v{s}, v{D+o}, v{D+2+o}')
        for r in range(2, 8):
            a(f'v_add_f32 v{s}, v{s}, v{D+2*r+o}')
    allreduce_add(a, S0, tmp+4); allreduce_add(a, S1, tmp+5)
    a(f'v_mul_f32 v{S0}, 0x{f2u(1/512):x}, v{S0}\nv_mul_f32 v{S1}, 0x{f2u(1/512):x}, v{S1}')
    for (q, s, o) in ((Q0, S0, 0), (Q1, S1, 1)):
        for r in range(8):
            a(f'v_sub_f32 v{T+r}, v{D+2*r+o}, v{s}')
        a(f'v_mul_f32 v{q}, v{T}, v{T}')
        for r in range(1, 8):
            a(f'v_fma_f32 v{q}, v{T+r}, v{T+r}, v{q}')
    allreduce_add(a, Q0, tmp+4); allreduce_add(a, Q1, tmp+5)
    a(f'v_mul_f32 v{Q0}, 0x{f2u(1/512):x}, v{Q0}\nv_mul_f32 v{Q1}, 0x{f2u(1/512):x}, v{Q1}')
    round_bf16_pair(a, Q0, Q1, tmp+4)
    round_bf16_pair(a, S0, S1, tmp+4)
    a(f'v_add_f32 v{Q0}, 0x{f2u(1e-5):x}, v{Q0}\nv_add_f32 v{Q1}, 0x{f2u(1e-5):x}, v{Q1}')
    round_bf16_pair(a, Q0, Q1, tmp+4)
    a(f'v_sqrt_f32 v{Q0}, v{Q0}\nv_sqrt_f32 v{Q1}, v{Q1}\ns_nop 0')
    round_bf16_pair(a, Q0, Q1, tmp+4)
    R0, R1 = tmp+6, tmp+7
    a(f'v_rcp_f32 v{R0}, v{Q0}\nv_rcp_f32 v{R1}, v{Q1}')
    for i in range(16):
        s = S0 if i % 2 == 0 else S1
        a(f'v_sub_f32 v{D+i}, v{D+i}, v{s}')
    for r in range(8):
        round_bf16_pair(a, D+2*r, D+2*r+1, tmp+4)
    for i in range(16):
        rr = R0 if i % 2 == 0 else R1; q = Q0 if i % 2 == 0 else Q1
        a(f'v_mul_f32 v{T}, v{D+i}, v{rr}')
        a(f'v_fma_f32 v{T+1}, -v{T}, v{q}, v{D+i}')
        a(f'v_fma_f32 v{D+i}, v{T+1}, v{rr}, v{T}')
    for r in range(8):
        round_bf16_pair(a, D+2*r, D+2*r+1, tmp+4)
    for r in range(8):
        a(f'buffer_store_short_d16_hi v{D+2*r}, v4, s[32:35], 0 offen offset:{r*128}')
        a(f'buffer_store_short_d16_hi v{D+2*r+1}, v4, s[32:35], 0 offen offset:{1024+r*128}')
    X = [D+2*r for r in range(8)]
    r8(a, X, T, U, 36, False)
    for k0 in range(1, 8):
        cmul_tw(a, X[k0], TW1+2*k0, tmp+4, False)
    for k0 in range(8):
        a(f'ds_write_b64 v120, v[{X[k0]}:{X[k0]+1}] offset:{k0*576}')
    a('s_waitcnt lgkmcnt(0)')
    for n1 in range(8):
        a(f'ds_read_b64 v[{X[n1]}:{X[n1]+1}], v121 offset:{n1*64}')
    a('s_waitcnt lgkmcnt(0)')
    r8(a, X, T, U, 36, False)
    for k1 in range(8):
        cmul_tw(a, X[k1], TW2+2*k1, tmp+4, False)
    for k1 in range(8):
        a(f'ds_write_b64 v122, v[{X[k1]}:{X[k1]+1}] offset:{k1*576}')
    a('s_waitcnt lgkmcnt(0)')
    for n0 in range(8):
        a(f'ds_read_b64 v[{X[n0]}:{X[n0]+1}], v123 offset:{n0*8}')
    a('s_waitcnt lgkmcnt(0)')
    r8(a, X, T, U, 36, False)
    a('s_waitcnt vmcnt(16)')
    for r in range(5):
        a(f'v_lshl_or_b32 v{WL+4*r}, v{WL+4*r+1}, 16, v{WL+4*r}')
        a(f'v_lshl_or_b32 v{WL+4*r+1}, v{WL+4*r+3}, 16, v{WL+4*r+2}')
    for r in range(4, 8):
        a(f'ds_write_b64 v120, v[{X[r]}:{X[r]+1}] offset:{(r-4)*512}')
    a(f'ds_write_b64 v120, v[{X[0]}:{X[0]+1}] offset:{2048}')
    a('s_waitcnt lgkmcnt(0)')
    M = T
    for r in range(4):
        a(f'ds_read_b64 v[{M+2*r}:{M+2*r+1}], v124 offset:{(3-r)*512}')
    a('v_lshlrev_b32 v128, 13, v1\nv_lshl_add_u32 v128, v3, 2, v128')
    a('v_lshlrev_b32 v129, 14, v1\nv_lshl_add_u32 v129, v3, 3, v129')
    a('s_waitcnt lgkmcnt(0)')
    O = TW1
    def sep(o, z, m):
        a(f'v_add_f32 v{o}, v{z}, v{m}\nv_sub_f32 v{o+1}, v{z+1}, v{m+1}')
        a(f'v_add_f32 v{o+2}, v{z+1}, v{m+1}\nv_sub_f32 v{o+3}, v{m}, v{z}')
    for r in range(4):
        sep(O+4*r, X[r], M+2*r)
        a(f's_mov_b32 s41, 0x{r*64*16384:x}')
        a(f'buffer_store_dwordx4 v[{O+4*r}:{O+4*r+3}], v129, s[24:27], s41 offen')
        a(f's_mov_b32 s42, 0x{r*64*8192:x}')
        a(f'buffer_store_dwordx2 v[{WL+4*r}:{WL+4*r+1}], v128, s[28:31], s42 offen')
    sep(O+16, X[4], X[4])
    a('v_cmp_eq_u32 vcc, 0, v1\ns_and_saveexec_b64 s[44:45], vcc')
    a(f's_mov_b32 s41, 0x{256*16384:x}')
    a(f'buffer_store_dwordx4 v[{O+16}:{O+19}], v129, s[24:27], s41 offen')
    a(f's_mov_b32 s42, 0x{256*8192:x}')
    a(f'buffer_store_dwordx2 v[{WL+16}:{WL+17}], v128, s[28:31], s42 offen')
    a.label('L_rows_done')
    a('s_endpgm')
    return a.text(), kernel_desc(N, 132), f'; @launch kernel={N} grid=(256,1,1) block=(256,1,1) lds={4*5120}'
```

```python
import sys
sys.path.insert(0, 'gen')
from common import *
import k_rows, k_cols, k_gemm, k_final, k_gemm2d
HDR = open('recurrent_scan__spectral_gfnet__swiglu_ffn__prompt.s.ref').read().split('\n')
hdr = [l for l in HDR if l.startswith(';') and '@launch' not in l and 'Override launch' not in l and 'grid=ceil' not in l]
def build(parts, path):
    out = '\n'.join(hdr) + '\n' + '\n'.join(p[2] for p in parts) + '\n'
    out += '.amdgcn_target "amdgcn-amd-amdhsa--gfx950"\n.text\n'
    out += '\n'.join(p[0] for p in parts)
    out += '.section .rodata,"a"\n' + '\n'.join('.p2align 6\n' + p[1] for p in parts)
    open(path, 'w').write(out)
if __name__ == '__main__':
    parts = [k_rows.gen_rows(), k_gemm.gen_gemm1(), k_gemm2d.gen_gemm2d(), k_final.gen_final()]
    build(parts, sys.argv[1] if len(sys.argv) > 1 else 'recurrent_scan__spectral_gfnet__swiglu_ffn__prompt.s')
```

```python
from common import *
def weave(a, mf, oth):
    n = len(mf); k = 0
    for i, m in enumerate(mf):
        a(m)
        tgt = (len(oth)*(i+1) + n - 1)//n
        while k < min(tgt, len(oth)):
            for l in oth[k]: a(l)
            k += 1
    while k < len(oth):
        for l in oth[k]: a(l)
        k += 1

def silu_pair(a, x0, x1, t):
    a(f'v_mul_f32 v{t}, 0x{f2u(-1.4426950408889634):x}, v{x0}\nv_mul_f32 v{t+1}, 0x{f2u(-1.4426950408889634):x}, v{x1}')
    a(f'v_exp_f32 v{t}, v{t}\nv_exp_f32 v{t+1}, v{t+1}\ns_nop 0')
    a(f'v_add_f32 v{t}, 1.0, v{t}\nv_add_f32 v{t+1}, 1.0, v{t+1}')
    a(f'v_rcp_f32 v{t}, v{t}\nv_rcp_f32 v{t+1}, v{t+1}\ns_nop 0')
    a(f'v_mul_f32 v{x0}, v{x0}, v{t}\nv_mul_f32 v{x1}, v{x1}, v{t+1}')

def gemm_body(a, c):
    BM, NP, K, NS = c['BM'], c['NP'], c['K'], c['NS']
    pA, pB = c['pitchA'], c['pitchB']
    MT = c['MT']; frags = c['frags']; units = c['units']
    NSTG = K//64; SA = BM*128; SB = 8192; SS = SA + NP*SB
    ACC = c['ACC']; AF = c['AF']; BF = c['BF']; NFU = max(len(u) for u in units)
    a('v_and_b32 v1, 63, v0\nv_lshrrev_b32 v2, 6, v0')
    a('s_nop 0\nv_readfirstlane_b32 s50, v2')
    a('s_nop 3\ns_lshl_b32 s51, s50, 10')
    t = c['tmp']
    a(f'v_lshrrev_b32 v{t}, 3, v1\nv_and_b32 v{t+1}, 7, v1\nv_xor_b32 v{t+2}, v{t+1}, v{t}')
    a(f'v_lshl_add_u32 v{t+3}, v2, 3, v{t}')
    a(f'v_mul_u32_u24 v3, 0x{pA:x}, v{t+3}\nv_lshl_add_u32 v3, v{t+2}, 4, v3')
    a(f'v_and_b32 v{t+2}, 2, v{t}\nv_and_b32 v{t+4}, 1, v2\nv_lshl_or_b32 v{t+2}, v{t+4}, 2, v{t+2}\nv_xor_b32 v{t+2}, v{t+1}, v{t+2}')
    a(f'v_mul_u32_u24 v4, 0x{pB:x}, v{t+3}\nv_lshl_add_u32 v4, v{t+2}, 4, v4')
    a(f'v_lshrrev_b32 v{t+5}, 1, v2\nv_and_b32 v{t+6}, 1, v2')
    a(f'v_and_b32 v{t}, 15, v1\nv_mul_u32_u24 v{t+1}, {MT*16}, v{t+5}\nv_add_u32 v{t}, v{t}, v{t+1}\nv_lshlrev_b32 v{t}, 7, v{t}')
    a(f'v_lshrrev_b32 v{t+1}, 4, v1\nv_and_b32 v{t+2}, 7, v1\nv_xor_b32 v{t+1}, v{t+1}, v{t+2}\nv_lshl_add_u32 v5, v{t+1}, 4, v{t}')
    a('v_xor_b32 v6, 64, v5')
    nts = c['nts']
    a(f'v_lshrrev_b32 v{t}, 4, v1\nv_bfe_u32 v{t+1}, v1, 2, 2\nv_and_b32 v{t+2}, 3, v1')
    a(f'v_lshl_add_u32 v{t+3}, v{t}, 3, v{t+1}\nv_lshlrev_b32 v{t+3}, 7, v{t+3}')
    a(f'v_and_b32 v{t+4}, 2, v{t+1}\nv_and_b32 v{t}, 1, v{t}\nv_lshl_or_b32 v{t+4}, v{t}, 2, v{t+4}')
    a(f'v_and_b32 v{t}, 1, v{t+2}\nv_lshl_add_u32 v{t+3}, v{t}, 3, v{t+3}')
    a(f'v_lshrrev_b32 v{t+2}, 1, v{t+2}')
    a(f'v_add_u32 v{t+3}, 0x{SA:x}, v{t+3}')
    if c['wn_panel']:
        a(f'v_lshl_add_u32 v{t+3}, v{t+6}, 13, v{t+3}')
    for ts in range(nts):
        if c['wn_panel']: a(f'v_mov_b32 v{t+7}, {2*ts}')
        else: a(f'v_lshlrev_b32 v{t+7}, 2, v{t+6}\nv_add_u32 v{t+7}, {2*ts}, v{t+7}')
        a(f'v_add_u32 v{t+7}, v{t+7}, v{t+2}\nv_xor_b32 v{t+7}, v{t+7}, v{t+4}\nv_lshl_add_u32 v{8+ts}, v{t+7}, 4, v{t+3}')
    NAD = 2 + nts
    base_regs = [5, 6] + [8+i for i in range(nts)]
    R0 = c['ADDR']
    for b in range(NS):
        for i, r in enumerate(base_regs):
            a(f'v_add_u32 v{R0+b*NAD+i}, 0x{b*SS:x}, v{r}')
    nacc = MT*len(frags)*4
    for i in range(nacc): a(f'v_mov_b32 v{ACC+i}, 0')
    def dma(s):
        L = []
        b = s % NS
        for j in range(BM//32):
            L.append([f's_add_u32 m0, s51, 0x{b*SS + j*4096:x}', f's_add_u32 s52, {c["soffA"]}, 0x{s*128 + 32*j*pA:x}',
                      f'buffer_load_dwordx4 v3, s[12:15], s52 offen lds'])
        for p in range(NP):
            for j in range(2):
                sr = c['bsrd'][p]
                L.append([f's_add_u32 m0, s51, 0x{b*SS + SA + p*SB + j*4096:x}',
                          f's_add_u32 s52, {c["soffB"]}, 0x{(s*64 + 32*j)*pB + c["bcol"][p]:x}',
                          f'buffer_load_dwordx4 v4, s[{sr}:{sr+3}], s52 offen lds'])
        return L
    ND = BM//32 + 2*NP
    import os
    VW = 0 if os.environ.get('VW0') else ND*(NS-2)
    seq = [(s, u, ui) for s in range(NSTG) for u in range(2) for ui in range(len(units))]
    def reads(i):
        s, u, ui = seq[i]; b = s % NS; L = []
        if ui == 0:
            for mt in range(MT):
                r = AF + u*MT*4 + mt*4
                L.append([f'ds_read_b128 v[{r}:{r+3}], v{R0+b*NAD+u} offset:{mt*2048}'])
        for jj, fid in enumerate(units[ui]):
            P, ts = frags[fid]
            r = BF + (i % 2)*NFU*4 + jj*4
            for h in range(2):
                L.append([f'ds_read_b64_tr_b16 v[{r+2*h}:{r+2*h+1}], v{R0+b*NAD+2+ts} offset:{P*c["pstride"] + (32*u+4*h)*128}'])
        return L
    def mfmas(i):
        s, u, ui = seq[i]; L = []
        for jj, fid in enumerate(units[ui]):
            rb = BF + (i % 2)*NFU*4 + jj*4
            for mt in range(MT):
                ra = AF + u*MT*4 + mt*4; d = ACC + (fid*MT + mt)*4
                L.append(f'v_mfma_f32_16x16x32_bf16 v[{d}:{d+3}], v[{rb}:{rb+3}], v[{ra}:{ra+3}], v[{d}:{d+3}]')
        return L
    for s in range(NS-1):
        for g in dma(s):
            for l in g: a(l)
    a(f's_waitcnt vmcnt({VW})\ns_barrier')
    if NS-1 < NSTG:
        for g in dma(NS-1):
            for l in g: a(l)
    for g in reads(0): a(g[0])
    for i in range(len(seq)):
        s, u, ui = seq[i]
        a('s_waitcnt lgkmcnt(0)')
        oth = []
        if u == 1 and ui == len(units)-1 and s+1 < NSTG:
            a(f's_waitcnt vmcnt({min(VW, ND*(min(NSTG-1, s+NS-1) - (s+1)))})\ns_barrier')
            if s+NS < NSTG: oth += dma(s+NS)
        if i+1 < len(seq): oth = reads(i+1) + oth
        weave(a, mfmas(i), oth)
    a('s_nop 7\ns_nop 7')

def gen_gemm1():
    a = Asm(); N = 'gemm1_kernel'
    a.raw(f'.globl {N}\n.p2align 8\n.type {N},@function\n{N}:')
    a('s_cmp_ge_u32 s2, 224\ns_cbranch_scc1 L_g1_done')
    gemm1_body(a, 's2')
    a.label('L_g1_done'); a('s_endpgm')
    return a.text(), kernel_desc(N, 256), f'; @launch kernel={N} grid=(224,1,1) block=(256,1,1) lds={2*49152}'

def gemm1_body(a, wg):
    a('s_load_dwordx2 s[10:11], s[0:1], 72\ns_load_dwordx2 s[4:5], s[0:1], 32\ns_load_dwordx2 s[6:7], s[0:1], 40')
    a(f's_and_b32 s46, {wg}, 3\ns_lshl_b32 s46, s46, 2\ns_bfe_u32 s47, {wg}, 0x20003\ns_add_u32 s46, s46, s47')
    a(f's_bfe_u32 s47, {wg}, 0x10002\ns_mul_i32 s47, s47, 7\ns_lshr_b32 s48, {wg}, 5\ns_add_u32 s47, s47, s48')
    a('s_lshl_b32 s48, s46, 17\ns_lshl_b32 s49, s47, 8')
    a('s_waitcnt lgkmcnt(0)')
    srd(a, 12, 10, 11, SZ_XN, OFF_XN); srd(a, 16, 4, 5, 512*3584); srd(a, 20, 6, 7, 512*3584); srd(a, 24, 10, 11, SZ_H, OFF_H)
    c = dict(BM=128, NP=4, K=512, NS=2, pitchA=1024, pitchB=3584, MT=4, frags=[(P, t) for P in range(2) for t in range(4)],
             units=[[0, 1, 2, 3], [4, 5, 6, 7]], ACC=128, AF=64, BF=96, tmp=40, nts=4, wn_panel=True, ADDR=16,
             soffA='s48', soffB='s49', bsrd=[16, 16, 20, 20], bcol=[0, 128, 0, 128], pstride=16384)
    gemm_body(a, c)
    a('v_and_b32 v40, 15, v1\nv_lshrrev_b32 v41, 1, v2\nv_lshl_add_u32 v40, v41, 6, v40\nv_mul_u32_u24 v40, 0xe00, v40')
    a('v_and_b32 v41, 1, v2\nv_lshlrev_b32 v41, 7, v41\nv_lshrrev_b32 v42, 4, v1\nv_lshl_add_u32 v41, v42, 3, v41\nv_add_u32 v40, v40, v41')
    a('s_mul_i32 s52, s46, 0x70000\ns_add_u32 s52, s52, s49')
    for mt in range(4):
        for t in range(4):
            G = 128 + (t*4+mt)*4; Uu = 128 + ((4+t)*4+mt)*4
            for h in range(2):
                g0 = G+2*h; u0 = Uu+2*h
                round_bf16_pair(a, g0, g0+1, 44)
                silu_pair(a, g0, g0+1, 44)
                round_bf16_pair(a, g0, g0+1, 44)
                round_bf16_pair(a, u0, u0+1, 44)
                a(f'v_mul_f32 v{g0}, v{g0}, v{u0}\nv_mul_f32 v{g0+1}, v{g0+1}, v{u0+1}')
                a(f'v_cvt_pk_bf16_f32 v{G+h}, v{g0}, v{g0+1}')
            a(f's_add_u32 s53, s52, 0x{mt*16*3584 + t*32:x}')
            a(f'buffer_store_dwordx2 v[{G}:{G+1}], v40, s[24:27], s53 offen')

def gen_gemm2():
    a = Asm(); N = 'gemm2_kernel'
    a.raw(f'.globl {N}\n.p2align 8\n.type {N},@function\n{N}:')
    a('s_cmp_ge_u32 s2, 256\ns_cbranch_scc1 L_g2_done')
    a('s_load_dwordx2 s[10:11], s[0:1], 72\ns_load_dwordx2 s[4:5], s[0:1], 48')
    a('s_and_b32 s46, s2, 3\ns_lshl_b32 s46, s46, 3\ns_bfe_u32 s47, s2, 0x30003\ns_add_u32 s46, s46, s47')
    a('s_bfe_u32 s47, s2, 0x10002\ns_lshl_b32 s47, s47, 2\ns_lshr_b32 s48, s2, 6\ns_add_u32 s47, s47, s48')
    a('s_mul_i32 s48, s46, 0x38000\ns_lshl_b32 s49, s47, 7')
    a('s_waitcnt lgkmcnt(0)')
    srd(a, 12, 10, 11, SZ_H, OFF_H); srd(a, 16, 4, 5, 1792*1024); srd(a, 24, 10, 11, SZ_G, OFF_G)
    NS = 4
    c = dict(BM=64, NP=1, K=1792, NS=NS, pitchA=3584, pitchB=1024, MT=2, frags=[(0, 0), (0, 1)],
             units=[[0, 1]], ACC=96, AF=64, BF=80, tmp=40, nts=2, wn_panel=False, ADDR=16,
             soffA='s48', soffB='s49', bsrd=[16], bcol=[0], pstride=0)
    gemm_body(a, c)
    a('v_and_b32 v40, 15, v1\nv_lshrrev_b32 v41, 1, v2\nv_lshl_add_u32 v40, v41, 5, v40\nv_lshlrev_b32 v40, 10, v40')
    a('v_and_b32 v41, 1, v2\nv_lshlrev_b32 v41, 6, v41\nv_lshrrev_b32 v42, 4, v1\nv_lshl_add_u32 v41, v42, 3, v41\nv_add_u32 v40, v40, v41')
    a('s_lshl_b32 s52, s46, 16\ns_add_u32 s52, s52, s49')
    for fid in range(2):
        for mt in range(2):
            G = 96 + (fid*2+mt)*4
            for h in range(2):
                g0 = G+2*h
                round_bf16_pair(a, g0, g0+1, 44)
                silu_pair(a, g0, g0+1, 44)
                a(f'v_cvt_pk_bf16_f32 v{G+h}, v{g0}, v{g0+1}')
            a(f's_add_u32 s53, s52, 0x{mt*16*1024 + fid*32:x}')
            a(f'buffer_store_dwordx2 v[{G}:{G+1}], v40, s[24:27], s53 offen')
    a.label('L_g2_done'); a('s_endpgm')
    return a.text(), kernel_desc(N, 112), f'; @launch kernel={N} grid=(256,1,1) block=(256,1,1) lds={NS*16384}'
```

```python
import math, struct
def f2u(f):
    return struct.unpack('<I', struct.pack('<f', f))[0]
class Asm:
    def __init__(self):
        self.L = []
    def __call__(self, s):
        for line in s.strip('\n').split('\n'):
            self.L.append('    ' + line.strip())
    def label(self, name):
        self.L.append(name + ':')
    def raw(self, s):
        self.L.append(s)
    def text(self):
        return '\n'.join(self.L) + '\n'

OFF_SPEC = 0
SZ_SPEC = 257*2048*8
OFF_WT = 0x500000
SZ_WT = 257*2048*4
OFF_XN = 0x800000
SZ_XN = 2048*512*2
OFF_H = 0xA00000
SZ_H = 2048*1792*2
OFF_G = 0x1200000
SZ_G = 2048*512*2

def srd(a, d, base_lo, base_hi, size, add=0):
    if add:
        a(f's_add_u32 s{d}, s{base_lo}, 0x{add:x}')
        a(f's_addc_u32 s{d+1}, s{base_hi}, 0')
    else:
        a(f's_mov_b32 s{d}, s{base_lo}')
        a(f's_mov_b32 s{d+1}, s{base_hi}')
    a(f's_mov_b32 s{d+2}, 0x{size:x}')
    a(f's_mov_b32 s{d+3}, 0x00020000')

def cadd(a, d, x, y):
    a(f'v_add_f32 v{d}, v{x}, v{y}'); a(f'v_add_f32 v{d+1}, v{x+1}, v{y+1}')
def csub(a, d, x, y):
    a(f'v_sub_f32 v{d}, v{x}, v{y}'); a(f'v_sub_f32 v{d+1}, v{x+1}, v{y+1}')
def cadd_rot(a, d, x, y, sgn):
    if sgn > 0:
        a(f'v_sub_f32 v{d}, v{x}, v{y+1}'); a(f'v_add_f32 v{d+1}, v{x+1}, v{y}')
    else:
        a(f'v_add_f32 v{d}, v{x}, v{y+1}'); a(f'v_sub_f32 v{d+1}, v{x+1}, v{y}')

def dft4(a, y, out, U, inv):
    c0, c1, c2, c3 = U, U+2, U+4, U+6
    cadd(a, c0, y[0], y[2]); csub(a, c1, y[0], y[2])
    cadd(a, c2, y[1], y[3]); csub(a, c3, y[1], y[3])
    cadd(a, out[0], c0, c2); csub(a, out[2], c0, c2)
    s = +1 if inv else -1
    cadd_rot(a, out[1], c1, c3, s); cadd_rot(a, out[3], c1, c3, -s)

def r8(a, x, T, U, sc, inv):
    A = [T+2*i for i in range(4)]; B = [T+8+2*i for i in range(4)]
    for i in range(4):
        cadd(a, A[i], x[i], x[i+4]); csub(a, B[i], x[i], x[i+4])
    t = U
    b1, b3 = B[1], B[3]
    if not inv:
        a(f'v_add_f32 v{t}, v{b1}, v{b1+1}'); a(f'v_sub_f32 v{t+1}, v{b1+1}, v{b1}')
        a(f'v_mul_f32 v{b1}, s{sc}, v{t}'); a(f'v_mul_f32 v{b1+1}, s{sc}, v{t+1}')
        a(f'v_sub_f32 v{t}, v{b3+1}, v{b3}'); a(f'v_add_f32 v{t+1}, v{b3}, v{b3+1}')
        a(f'v_mul_f32 v{b3}, s{sc}, v{t}'); a(f'v_mul_f32 v{b3+1}, s{sc}, v{t+1}')
        a(f'v_sub_f32 v{b3+1}, 0, v{b3+1}')
    else:
        a(f'v_sub_f32 v{t}, v{b1}, v{b1+1}'); a(f'v_add_f32 v{t+1}, v{b1}, v{b1+1}')
        a(f'v_mul_f32 v{b1}, s{sc}, v{t}'); a(f'v_mul_f32 v{b1+1}, s{sc}, v{t+1}')
        a(f'v_add_f32 v{t}, v{b3}, v{b3+1}'); a(f'v_sub_f32 v{t+1}, v{b3}, v{b3+1}')
        a(f'v_mul_f32 v{b3}, s{sc}, v{t}'); a(f'v_mul_f32 v{b3+1}, s{sc}, v{t+1}')
        a(f'v_sub_f32 v{b3}, 0, v{b3}')
    b2 = B[2]
    if not inv:
        a(f'v_sub_f32 v{t}, 0, v{b2}'); a(f'v_mov_b32 v{b2}, v{b2+1}'); a(f'v_mov_b32 v{b2+1}, v{t}')
    else:
        a(f'v_sub_f32 v{t}, 0, v{b2+1}'); a(f'v_mov_b32 v{b2+1}, v{b2}'); a(f'v_mov_b32 v{b2}, v{t}')
    dft4(a, A, [x[0], x[2], x[4], x[6]], U, inv)
    dft4(a, B, [x[1], x[3], x[5], x[7]], U, inv)

def cmul_tw(a, x, w, t, conj):
    a(f'v_mul_f32 v{t}, v{x+1}, v{w+1}')
    a(f'v_mul_f32 v{t+1}, v{x}, v{w+1}')
    if not conj:
        a(f'v_fma_f32 v{x}, v{x}, v{w}, -v{t}')
        a(f'v_fma_f32 v{x+1}, v{x+1}, v{w}, v{t+1}')
    else:
        a(f'v_fma_f32 v{x}, v{x}, v{w}, v{t}')
        a(f'v_fma_f32 v{x+1}, v{x+1}, v{w}, -v{t+1}')

def sincos(a, w, ang):
    a(f'v_cos_f32 v{w}, v{ang}')
    a(f'v_sin_f32 v{w+1}, v{ang}')

def allreduce_add(a, v, t):
    a('s_nop 1')
    a(f'v_add_f32_dpp v{v}, v{v}, v{v} quad_perm:[1,0,3,2] row_mask:0xf bank_mask:0xf')
    a('s_nop 1')
    a(f'v_add_f32_dpp v{v}, v{v}, v{v} quad_perm:[2,3,0,1] row_mask:0xf bank_mask:0xf')
    a('s_nop 1')
    a(f'v_add_f32_dpp v{v}, v{v}, v{v} row_half_mirror row_mask:0xf bank_mask:0xf')
    a('s_nop 1')
    a(f'v_add_f32_dpp v{v}, v{v}, v{v} row_mirror row_mask:0xf bank_mask:0xf')
    a(f'v_mov_b32 v{t}, v{v}')
    a('s_nop 1')
    a(f'v_permlane16_swap_b32 v{v}, v{t}')
    a(f'v_add_f32 v{v}, v{v}, v{t}')
    a(f'v_mov_b32 v{t}, v{v}')
    a('s_nop 1')
    a(f'v_permlane32_swap_b32 v{v}, v{t}')
    a(f'v_add_f32 v{v}, v{v}, v{t}')

def round_bf16_pair(a, x0, x1, t):
    a(f'v_cvt_pk_bf16_f32 v{t}, v{x0}, v{x1}')
    a(f'v_lshlrev_b32 v{x0}, 16, v{t}')
    a(f'v_and_b32 v{x1}, 0xffff0000, v{t}')
def round_bf16(a, x, t):
    a(f'v_cvt_pk_bf16_f32 v{t}, v{x}, v{x}')
    a(f'v_lshlrev_b32 v{x}, 16, v{t}')

def kernel_desc(name, vgpr, agpr=0, sgpr=100):
    acc = (vgpr + 3)//4*4
    tot = acc + agpr
    return f""".amdhsa_kernel {name}
  .amdhsa_next_free_vgpr {tot}
  .amdhsa_next_free_sgpr {sgpr}
  .amdhsa_accum_offset {acc}
  .amdhsa_group_segment_fixed_size 0
  .amdhsa_kernarg_size 80
  .amdhsa_user_sgpr_count 2
  .amdhsa_user_sgpr_kernarg_segment_ptr 1
  .amdhsa_system_sgpr_workgroup_id_x 1
.end_amdhsa_kernel
"""

import os
def stamp(a, idx):
    if os.environ.get('DBGT'):
        a(f's_memrealtime s[{70+2*idx}:{71+2*idx}]')
def stamp_flush(a, n, wgreg='s2'):
    if os.environ.get('DBGT'):
        a('s_load_dwordx2 s[68:69], s[0:1], 64\ns_waitcnt lgkmcnt(0)')
        a(f's_lshl_b32 s67, {wgreg}, 5')
        for i in range(n):
            a(f's_add_u32 s66, s67, {4*i}\nv_mov_b32 v0, s{70+2*i}\nv_mov_b32 v1, s66\nglobal_store_dword v1, v0, s[68:69]')
        a('s_waitcnt vmcnt(0)')
```

```python
from common import *
from k_rows import tw_rows
def gen_final():
    a = Asm()
    N = 'final_kernel'
    a.raw(f'.globl {N}\n.p2align 8\n.type {N},@function\n{N}:')
    a('s_cmp_ge_u32 s2, 256\ns_cbranch_scc1 L_fin_done')
    final_body(a)

def final_body(a, waitA=None, waitB=None):
    a('s_load_dwordx2 s[4:5], s[0:1], 0\ns_load_dwordx2 s[6:7], s[0:1], 56\ns_load_dwordx2 s[10:11], s[0:1], 72')
    a('v_and_b32 v1, 63, v0\nv_lshrrev_b32 v2, 6, v0')
    a('s_lshl_b32 s40, s2, 3')
    a('v_lshlrev_b32 v3, 1, v2\nv_add_u32 v3, s40, v3')
    a('v_lshlrev_b32 v4, 10, v3\nv_lshl_add_u32 v4, v1, 1, v4')
    a('v_lshlrev_b32 v5, 14, v1\nv_lshl_add_u32 v5, v3, 3, v5')
    a('v_sub_u32 v6, 64, v1\nv_lshlrev_b32 v6, 14, v6\nv_lshl_add_u32 v6, v3, 3, v6')
    a(f's_mov_b32 s36, 0x{f2u(math.sqrt(0.5)):x}')
    for r in range(4): a(f's_mov_b32 s{44+r}, 0x{r*64*16384:x}')
    a('s_waitcnt lgkmcnt(0)')
    srd(a, 12, 4, 5, 2048*512*2)
    srd(a, 16, 6, 7, 2048*512*2)
    srd(a, 24, 10, 11, SZ_SPEC, OFF_SPEC)
    srd(a, 32, 10, 11, SZ_G, OFF_G)
    D = 8; YL = 24; T = 24; U = 40; TW1 = 68; TW2 = 84; tmp = 100; XL = 132; GL = 148
    def xl():
        for r in range(8):
            a(f'buffer_load_ushort v{XL+2*r}, v4, s[12:15], 0 offen offset:{r*128}')
            a(f'buffer_load_ushort v{XL+2*r+1}, v4, s[12:15], 0 offen offset:{1024+r*128}')
    def gl():
        for r in range(8):
            a(f'buffer_load_ushort v{GL+2*r}, v4, s[32:35], 0 offen offset:{r*128}')
            a(f'buffer_load_ushort v{GL+2*r+1}, v4, s[32:35], 0 offen offset:{1024+r*128}')
    if waitA: xl(); waitA(a)
    for r in range(8):
        vo, so = ('v5', 44+r) if r < 4 else ('v6', 44+7-r)
        a(f'buffer_load_dwordx4 v[{YL+4*r}:{YL+4*r+3}], {vo}, s[24:27], s{so} offen')
    if not waitA: xl(); gl()
    tw_rows(a, 1, TW1, TW2, tmp)
    a('v_mul_u32_u24 v125, 5120, v2')
    a('v_lshl_add_u32 v120, v1, 3, v125')
    a('v_lshrrev_b32 v126, 3, v1\nv_and_b32 v127, 7, v1')
    a('v_mul_u32_u24 v128, 72, v126\nv_add_u32 v128, v128, v127\nv_lshl_add_u32 v121, v128, 3, v125')
    a('v_mul_u32_u24 v128, 9, v126\nv_add_u32 v128, v128, v127\nv_lshl_add_u32 v122, v128, 3, v125')
    a('v_mul_u32_u24 v128, 72, v126\nv_mul_u32_u24 v129, 9, v127\nv_add_u32 v128, v128, v129\nv_lshl_add_u32 v123, v128, 3, v125')
    a('v_cmp_eq_u32 vcc, 0, v1\nv_mov_b32 v129, 0')
    a('s_waitcnt vmcnt(32)' if not waitA else 's_waitcnt vmcnt(0)')
    X = [D+2*r for r in range(8)]
    for r in (0, 4):
        a(f'v_cndmask_b32 v{YL+4*r+1}, v{YL+4*r+1}, v129, vcc\nv_cndmask_b32 v{YL+4*r+3}, v{YL+4*r+3}, v129, vcc')
    for r in range(8):
        y = YL+4*r
        if r < 4:
            a(f'v_sub_f32 v{X[r]}, v{y}, v{y+3}\nv_add_f32 v{X[r]+1}, v{y+1}, v{y+2}')
        else:
            a(f'v_add_f32 v{X[r]}, v{y}, v{y+3}\nv_sub_f32 v{X[r]+1}, v{y+2}, v{y+1}')
    r8(a, X, T, U, 36, True)
    for n0 in range(8): a(f'ds_write_b64 v123, v[{X[n0]}:{X[n0]+1}] offset:{n0*8}')
    a('s_waitcnt lgkmcnt(0)')
    for k1 in range(8): a(f'ds_read_b64 v[{X[k1]}:{X[k1]+1}], v122 offset:{k1*576}')
    a('s_waitcnt lgkmcnt(0)')
    for k1 in range(8): cmul_tw(a, X[k1], TW2+2*k1, tmp+4, True)
    r8(a, X, T, U, 36, True)
    for n1 in range(8): a(f'ds_write_b64 v121, v[{X[n1]}:{X[n1]+1}] offset:{n1*64}')
    a('s_waitcnt lgkmcnt(0)')
    for k0 in range(8): a(f'ds_read_b64 v[{X[k0]}:{X[k0]+1}], v120 offset:{k0*576}')
    a('s_waitcnt lgkmcnt(0)')
    for k0 in range(1, 8): cmul_tw(a, X[k0], TW1+2*k0, tmp+4, True)
    r8(a, X, T, U, 36, True)
    if waitB: waitB(a); gl()
    a('s_waitcnt vmcnt(0)')
    for r in range(8):
        for o in range(2):
            a(f'v_lshlrev_b32 v{XL+2*r+o}, 16, v{XL+2*r+o}\nv_lshlrev_b32 v{GL+2*r+o}, 16, v{GL+2*r+o}')
        round_bf16_pair(a, X[r], X[r]+1, tmp)
        a(f'v_mul_f32 v{X[r]}, v{X[r]}, v{GL+2*r}\nv_mul_f32 v{X[r]+1}, v{X[r]+1}, v{GL+2*r+1}')
        round_bf16_pair(a, X[r], X[r]+1, tmp)
        a(f'v_add_f32 v{X[r]}, v{X[r]}, v{XL+2*r}\nv_add_f32 v{X[r]+1}, v{X[r]+1}, v{XL+2*r+1}')
        a(f'v_cvt_pk_bf16_f32 v{X[r]}, v{X[r]}, v{X[r]+1}')
        a(f'buffer_store_short v{X[r]}, v4, s[16:19], 0 offen offset:{r*128}')
        a(f'buffer_store_short_d16_hi v{X[r]}, v4, s[16:19], 0 offen offset:{1024+r*128}')
```

```python
from common import *
def weave(a, mf, rd, oth, span):
    n = len(mf); nr = max(1, int(n*span)); k = 0; k2 = 0
    for i, m in enumerate(mf):
        a(m)
        tgt = min(len(rd), (len(rd)*(i+1) + nr - 1)//nr)
        while k < tgt:
            for l in rd[k]: a(l)
            k += 1
        tgt = (len(oth)*(i+1) + n - 1)//n
        while k2 < tgt:
            for l in oth[k2]: a(l)
            k2 += 1

def silu_pair(a, x0, x1, t):
    a(f'v_mul_f32 v{t}, 0x{f2u(-1.4426950408889634):x}, v{x0}\nv_mul_f32 v{t+1}, 0x{f2u(-1.4426950408889634):x}, v{x1}')
    a(f'v_exp_f32 v{t}, v{t}\nv_exp_f32 v{t+1}, v{t+1}\ns_nop 0')
    a(f'v_add_f32 v{t}, 1.0, v{t}\nv_add_f32 v{t+1}, 1.0, v{t+1}')
    a(f'v_rcp_f32 v{t}, v{t}\nv_rcp_f32 v{t+1}, v{t+1}\ns_nop 0')
    a(f'v_mul_f32 v{x0}, v{x0}, v{t}\nv_mul_f32 v{x1}, v{x1}, v{t+1}')

def act_block(a, items, T, swiglu):
    def each(f):
        for n, it in enumerate(items): f(it, T+2*n)
    if not swiglu:
        pass
    each(lambda it, t: a(f'v_cvt_pk_bf16_f32 v{t}, v{it[0]}, v{it[0]+1}'))
    each(lambda it, t: a(f'v_lshlrev_b32 v{it[0]}, 16, v{t}\nv_and_b32 v{it[0]+1}, 0xffff0000, v{t}'))
    each(lambda it, t: a(f'v_pk_mul_f32 v[{t}:{t+1}], v[{it[0]}:{it[0]+1}], s[60:61]'))
    each(lambda it, t: a(f'v_exp_f32 v{t}, v{t}\nv_exp_f32 v{t+1}, v{t+1}'))
    each(lambda it, t: a(f'v_pk_add_f32 v[{t}:{t+1}], v[{t}:{t+1}], s[62:63]'))
    each(lambda it, t: a(f'v_rcp_f32 v{t}, v{t}\nv_rcp_f32 v{t+1}, v{t+1}'))
    each(lambda it, t: a(f'v_pk_mul_f32 v[{it[0]}:{it[0]+1}], v[{it[0]}:{it[0]+1}], v[{t}:{t+1}]'))
    if not swiglu:
        each(lambda it, t: a(f'v_cvt_pk_bf16_f32 v{it[2]}, v{it[0]}, v{it[0]+1}'))
        return
    each(lambda it, t: a(f'v_cvt_pk_bf16_f32 v{t}, v{it[0]}, v{it[0]+1}\nv_cvt_pk_bf16_f32 v{t+1}, v{it[1]}, v{it[1]+1}'))
    each(lambda it, t: a(f'v_lshlrev_b32 v{it[0]}, 16, v{t}\nv_and_b32 v{it[0]+1}, 0xffff0000, v{t}'))
    each(lambda it, t: a(f'v_lshlrev_b32 v{it[1]}, 16, v{t+1}\nv_and_b32 v{it[1]+1}, 0xffff0000, v{t+1}'))
    each(lambda it, t: a(f'v_pk_mul_f32 v[{it[0]}:{it[0]+1}], v[{it[0]}:{it[0]+1}], v[{it[1]}:{it[1]+1}]'))
    each(lambda it, t: a(f'v_cvt_pk_bf16_f32 v{it[2]}, v{it[0]}, v{it[0]+1}'))

def act_consts(a):
    a(f's_mov_b32 s60, 0x{f2u(-1.4426950408889634):x}\ns_mov_b32 s61, 0x{f2u(-1.4426950408889634):x}\ns_mov_b32 s62, 1.0\ns_mov_b32 s63, 1.0')

def gemm_body(a, c):
    BM, NP, K, NS = c['BM'], c['NP'], c['K'], c['NS']
    pA, pB = c['pitchA'], c['pitchB']
    MT = c['MT']; frags = c['frags']; units = c['units']
    NSTG = K//64; SA = BM*128; SB = 8192; SS = SA + NP*SB
    ACC = c['ACC']; AF = c['AF']; BF = c['BF']
    a('v_and_b32 v1, 63, v0\nv_lshrrev_b32 v2, 6, v0')
    a('s_nop 0\nv_readfirstlane_b32 s50, v2')
    a('s_nop 3\ns_lshl_b32 s51, s50, 10')
    t = c['tmp']
    a(f'v_lshrrev_b32 v{t}, 3, v1\nv_and_b32 v{t+1}, 7, v1\nv_xor_b32 v{t+2}, v{t+1}, v{t}')
    a(f'v_lshl_add_u32 v{t+3}, v2, 3, v{t}')
    a(f'v_mul_u32_u24 v3, 0x{pA:x}, v{t+3}\nv_lshl_add_u32 v3, v{t+2}, 4, v3')
    a(f'v_and_b32 v{t+2}, 2, v{t}\nv_and_b32 v{t+4}, 1, v2\nv_lshl_or_b32 v{t+2}, v{t+4}, 2, v{t+2}\nv_xor_b32 v{t+2}, v{t+1}, v{t+2}')
    a(f'v_mul_u32_u24 v4, 0x{pB:x}, v{t+3}\nv_lshl_add_u32 v4, v{t+2}, 4, v4')
    def dma(s):
        L = []
        b = s % NS
        for j in range(BM//32):
            L.append([f's_add_u32 m0, s51, 0x{b*SS + j*4096:x}', f's_add_u32 s52, {c["soffA"]}, 0x{s*128 + 32*j*pA:x}',
                      f'buffer_load_dwordx4 v3, s[12:15], s52 offen lds'])
        for p in range(NP):
            for j in range(2):
                sr = c['bsrd'][p]
                L.append([f's_add_u32 m0, s51, 0x{b*SS + SA + p*SB + j*4096:x}',
                          f's_add_u32 s52, {c["soffB"]}, 0x{(s*64 + 32*j)*pB + c["bcol"][p]:x}',
                          f'buffer_load_dwordx4 v4, s[{sr}:{sr+3}], s52 offen lds'])
        return L
    ND = BM//32 + 2*NP
    import os
    VW = 0 if os.environ.get('VW0') else ND*(NS-2)
    for s_ in range(NS-1):
        for g in dma(s_):
            for l in g: a(l)
    a(f'v_lshrrev_b32 v{t+5}, 1, v2\nv_and_b32 v{t+6}, 1, v2')
    a(f'v_and_b32 v{t}, 15, v1\nv_mul_u32_u24 v{t+1}, {MT*16}, v{t+5}\nv_add_u32 v{t}, v{t}, v{t+1}\nv_lshlrev_b32 v{t}, 7, v{t}')
    a(f'v_lshrrev_b32 v{t+1}, 4, v1\nv_and_b32 v{t+2}, 7, v1\nv_xor_b32 v{t+1}, v{t+1}, v{t+2}\nv_lshl_add_u32 v5, v{t+1}, 4, v{t}')
    a('v_xor_b32 v6, 64, v5')
    nts = c['nts']
    a(f'v_lshrrev_b32 v{t}, 4, v1\nv_bfe_u32 v{t+1}, v1, 2, 2\nv_and_b32 v{t+2}, 3, v1')
    a(f'v_lshl_add_u32 v{t+3}, v{t}, 3, v{t+1}\nv_lshlrev_b32 v{t+3}, 7, v{t+3}')
    a(f'v_and_b32 v{t+4}, 2, v{t+1}\nv_and_b32 v{t}, 1, v{t}\nv_lshl_or_b32 v{t+4}, v{t}, 2, v{t+4}')
    a(f'v_and_b32 v{t}, 1, v{t+2}\nv_lshl_add_u32 v{t+3}, v{t}, 3, v{t+3}')
    a(f'v_lshrrev_b32 v{t+2}, 1, v{t+2}')
    a(f'v_add_u32 v{t+3}, 0x{SA:x}, v{t+3}')
    if c['wn_panel']:
        a(f'v_lshl_add_u32 v{t+3}, v{t+6}, 13, v{t+3}')
    for ts in range(nts):
        if c['wn_panel']: a(f'v_mov_b32 v{t+7}, {2*ts}')
        else: a(f'v_lshlrev_b32 v{t+7}, 2, v{t+6}\nv_add_u32 v{t+7}, {2*ts}, v{t+7}')
        a(f'v_add_u32 v{t+7}, v{t+7}, v{t+2}\nv_xor_b32 v{t+7}, v{t+7}, v{t+4}\nv_lshl_add_u32 v{8+ts}, v{t+7}, 4, v{t+3}')
    NAD = 2 + nts
    base_regs = [5, 6] + [8+i for i in range(nts)]
    R0 = c['ADDR']
    for b in range(NS):
        for i, r in enumerate(base_regs):
            a(f'v_add_u32 v{R0+b*NAD+i}, 0x{b*SS:x}, v{r}')
    seq = [(s, ui) for s in range(NSTG) for ui in range(len(units))]
    NA = c['NA']; NB = max(sum(len(f) for _, f in un) for un in units)
    firstu = {}
    for ui, un in enumerate(units):
        for (u, _) in un: firstu.setdefault(u, ui)
    def areg(s, u, mt): return AF + ((2*s+u) % NA)*MT*4 + mt*4
    def reads(i):
        s, ui = seq[i]; b = s % NS; L = []; slot = 0
        for (u, fl) in units[ui]:
            if firstu[u] == ui:
                for mt in range(MT):
                    r = areg(s, u, mt)
                    L.append([f'ds_read_b128 v[{r}:{r+3}], v{R0+b*NAD+u} offset:{mt*2048}'])
            for fid in fl:
                P, ts = frags[fid]
                r = BF + (i % 2)*NB*4 + slot*4; slot += 1
                for h in range(2):
                    L.append([f'ds_read_b64_tr_b16 v[{r+2*h}:{r+2*h+1}], v{R0+b*NAD+2+ts} offset:{P*c["pstride"] + (32*u+4*h)*128}'])
        return L
    def mfmas(i):
        s, ui = seq[i]; L = []; slot = 0
        for (u, fl) in units[ui]:
            for fid in fl:
                rb = BF + (i % 2)*NB*4 + slot*4; slot += 1
                for mt in range(MT):
                    ra = areg(s, u, mt); d = ACC + (fid*MT + mt)*4
                    cc = '0' if (s == 0 and u == 0) else f'v[{d}:{d+3}]'
                    L.append(f'v_mfma_f32_16x16x32_bf16 v[{d}:{d+3}], v[{rb}:{rb+3}], v[{ra}:{ra+3}], {cc}')
        return L
    stamp(a, 1)
    a(f's_waitcnt vmcnt({VW})\ns_barrier')
    stamp(a, 2)
    if NS-1 < NSTG:
        for g in dma(NS-1):
            for l in g: a(l)
    for g in reads(0): a(g[0])
    pend = []; per = (ND + len(units) - 1)//len(units) if NS > 2 else ND
    for i in range(len(seq)):
        s, ui = seq[i]
        a('s_waitcnt lgkmcnt(0)')
        if ui == len(units)-1 and s+1 < NSTG:
            assert not pend
            a(f's_waitcnt vmcnt({min(VW, ND*(min(NSTG-1, s+NS-1) - (s+1)))})\ns_barrier')
            if s+NS < NSTG: pend = dma(s+NS)
        oth = pend[:per]; pend = pend[per:]
        rd = reads(i+1) if i+1 < len(seq) else []
        weave(a, mfmas(i), rd, oth, c['span'])
    a('s_nop 7\ns_nop 7')
    stamp(a, 3)

def gen_gemm1():
    a = Asm(); N = 'gemm1_kernel'
    a.raw(f'.globl {N}\n.p2align 8\n.type {N},@function\n{N}:')
    a('s_cmp_ge_u32 s2, 224\ns_cbranch_scc1 L_g1_done')
    stamp(a, 0)
    gemm1_body(a, 's2')
    a('s_waitcnt vmcnt(0) lgkmcnt(0)')
    stamp(a, 4)
    a('s_waitcnt lgkmcnt(0)')
    stamp_flush(a, 5)
    a.label('L_g1_done'); a('s_endpgm')
    return a.text(), kernel_desc(N, 256), f'; @launch kernel={N} grid=(224,1,1) block=(256,1,1) lds={3*49152}'

def gemm1_body(a, wg):
    a('s_load_dwordx2 s[10:11], s[0:1], 72\ns_load_dwordx2 s[4:5], s[0:1], 32\ns_load_dwordx2 s[6:7], s[0:1], 40')
    a(f's_and_b32 s46, {wg}, 3\ns_lshl_b32 s46, s46, 2\ns_bfe_u32 s47, {wg}, 0x20003\ns_add_u32 s46, s46, s47')
    a(f's_bfe_u32 s47, {wg}, 0x10002\ns_mul_i32 s47, s47, 7\ns_lshr_b32 s48, {wg}, 5\ns_add_u32 s47, s47, s48')
    a('s_lshl_b32 s48, s46, 17\ns_lshl_b32 s49, s47, 8')
    a('s_waitcnt lgkmcnt(0)')
    srd(a, 12, 10, 11, SZ_XN, OFF_XN); srd(a, 16, 4, 5, 512*3584); srd(a, 20, 6, 7, 512*3584); srd(a, 24, 10, 11, SZ_H, OFF_H)
    c = dict(BM=128, NP=4, K=512, NS=3, pitchA=1024, pitchB=3584, MT=4, frags=[(P, t) for P in range(2) for t in range(4)],
             units=[[(0, [0, 1, 2, 3])], [(0, [4, 5, 6, 7])], [(1, [0, 1, 2, 3])], [(1, [4, 5, 6, 7])]], NA=2, span=0.5, ACC=128, AF=64, BF=96, tmp=40, nts=4, wn_panel=True, ADDR=16,
             soffA='s48', soffB='s49', bsrd=[16, 16, 20, 20], bcol=[0, 128, 0, 128], pstride=16384)
    gemm_body(a, c)
    a('v_lshrrev_b32 v41, 1, v2\nv_mul_u32_u24 v40, 0x38000, v41\nv_and_b32 v41, 1, v2\nv_lshl_add_u32 v40, v41, 11, v40\nv_lshl_add_u32 v40, v1, 4, v40')
    a('s_mul_i32 s52, s46, 0x70000\ns_lshl_b32 s53, s47, 12\ns_add_u32 s52, s52, s53')
    act_consts(a)
    for mt in range(4):
        for tp in range(2):
            items = []
            G0 = 128 + (2*tp*4+mt)*4
            for j, t in enumerate((2*tp, 2*tp+1)):
                G = 128 + (t*4+mt)*4; Uu = 128 + ((4+t)*4+mt)*4
                items += [(G, Uu, G0+2*j), (G+2, Uu+2, G0+2*j+1)]
            act_block(a, items, 44, True)
            a(f's_add_u32 s53, s52, 0x{(mt*56 + tp)*1024:x}')
            a(f'buffer_store_dwordx4 v[{G0}:{G0+3}], v40, s[24:27], s53 offen')
```

```python
from common import *
from k_gemm import act_block, act_consts
OFF_WDT = 0x1400000
SZ_WDT = 512*3584
OFF_CNT = 0x1800000
MERGE = bool(os.environ.get('MERGE'))
def cnt_base(a):
    a(f's_load_dwordx2 s[56:57], s[0:1], 72\ns_waitcnt lgkmcnt(0)\ns_add_u32 s56, s56, 0x{OFF_CNT:x}\ns_addc_u32 s57, s57, 0')
_sn = [0]
def signal(a, wsg):
    n = _sn[0]; _sn[0] += 1
    a(f's_waitcnt vmcnt(0)\ns_barrier\ns_cmp_lg_u32 {wsg}, 0\ns_cbranch_scc1 L_sg{n}')
    cnt_base(a)
    a('s_lshl_b32 s58, s3, 2\ns_mov_b64 exec, 1\nv_mov_b32 v1, 1\nv_mov_b32 v2, s58\nglobal_store_dword v2, v1, s[56:57] sc0 sc1')
    a.label(f'L_sg{n}')
_wn = [0]
def waiter(off, extra):
    def f(a):
        n = _wn[0]; _wn[0] += 1
        cnt_base(a)
        a(f's_mov_b32 s58, 0x40000\nv_lshlrev_b32 v131, 4, v1\nv_readfirstlane_b32 s59, v2\ns_cmp_lg_u32 s59, 0\ns_cbranch_scc1 L_wd{n}')
        a.label(f'L_w{n}')
        a(f'global_load_dwordx4 v[126:129], v131, s[56:57] offset:{off} sc0 sc1')
        if extra: a(f'global_load_dword v130, v131, s[56:57] offset:{off+1024} sc0 sc1')
        a('s_waitcnt vmcnt(0)\nv_min_u32 v126, v126, v127\nv_min_u32 v128, v128, v129\nv_min_u32 v126, v126, v128')
        if extra: a('v_readfirstlane_b32 s59, v130\nv_min_u32 v126, s59, v126')
        a(f'v_cmp_eq_u32 vcc, 0, v126\ns_cmp_eq_u64 vcc, 0\ns_cbranch_scc1 L_wd{n}\ns_sub_u32 s58, s58, 1\ns_cmp_eq_u32 s58, 0\ns_cbranch_scc1 L_wd{n}\ns_sleep 8\ns_branch L_w{n}')
        a.label(f'L_wd{n}')
        a('s_barrier')
    return f

def wdt_body(a, jreg):
    a('s_load_dwordx2 s[10:11], s[0:1], 72\ns_load_dwordx2 s[4:5], s[0:1], 48')
    a(f's_lshr_b32 s46, {jreg}, 3\ns_and_b32 s47, {jreg}, 7')
    a('s_lshl_b32 s48, s46, 16\ns_lshl_b32 s49, s47, 7\ns_add_u32 s48, s48, s49\ns_add_u32 s50, s48, 0x4000')
    a('s_mul_i32 s51, s47, 0x38000\ns_lshl_b32 s49, s46, 11\ns_add_u32 s51, s51, s49')
    a('s_mov_b32 s52, 0x05040100\ns_mov_b32 s53, 0x07060302')
    a('v_and_b32 v1, 7, v0\nv_bfe_u32 v2, v0, 3, 2\nv_bfe_u32 v5, v0, 5, 2\nv_lshrrev_b32 v6, 7, v0')
    a('v_lshlrev_b32 v3, 15, v6\nv_lshl_add_u32 v3, v2, 12, v3\nv_lshl_add_u32 v3, v5, 5, v3\nv_lshl_add_u32 v3, v1, 2, v3')
    a('v_mul_u32_u24 v4, 0xe000, v5\nv_lshl_add_u32 v4, v6, 10, v4\nv_lshl_add_u32 v4, v2, 8, v4\nv_lshl_add_u32 v4, v1, 5, v4')
    a('s_waitcnt lgkmcnt(0)')
    srd(a, 12, 4, 5, 1792*1024); srd(a, 16, 10, 11, SZ_WDT, OFF_WDT)
    if MERGE: srd(a, 20, 10, 11, 4096, OFF_CNT)
    if MERGE: a(f's_cmp_lg_u32 {jreg}, 0\ns_cbranch_scc1 L_wdt_nz\nv_mov_b32 v30, 0\nv_mov_b32 v31, 0\nv_mov_b32 v32, 0\nv_mov_b32 v33, 0\nv_lshlrev_b32 v34, 4, v0\nbuffer_store_dwordx4 v[30:33], v34, s[20:23], 0 offen')
    a.label('L_wdt_nz')
    for i in range(8):
        a(f'buffer_load_dword v{10+i}, v3, s[12:15], {"s48" if i < 4 else "s50"} offen offset:{(i%4)*1024}')
    a('s_waitcnt vmcnt(0)')
    for c, sel in ((0, 's52'), (1, 's53')):
        for p in range(4):
            a(f'v_perm_b32 v{20+4*c+p}, v{11+2*p}, v{10+2*p}, {sel}')
    a('buffer_store_dwordx4 v[20:23], v4, s[16:19], s51 offen')
    a('buffer_store_dwordx4 v[24:27], v4, s[16:19], s51 offen offset:16')
    a('s_endpgm')

def gemm2d_body(a, NSLOT=46):
    ACC, VOFF, SL0 = 0, 64, 72
    for j in range(4):
        a(f's_mul_i32 s{80+j}, s46, 0x38000\ns_mul_i32 s{84+j}, s47, 0x38000')
        if j: a(f's_add_u32 s{80+j}, s{80+j}, {j*4096}\ns_add_u32 s{84+j}, s{84+j}, {j*4096}')
    a('v_lshrrev_b32 v70, 6, v0\nv_mul_u32_u24 v69, 0x3800, v70\nv_and_b32 v71, 63, v0\nv_lshlrev_b32 v71, 4, v71\nv_add_u32 v64, v71, v69')
    for i in range(1, 4): a(f'v_add_u32 v{VOFF+i}, 0x{i*56*1024:x}, v64')
    a('v_readfirstlane_b32 s54, v70')
    a('v_and_b32 v68, 15, v0\nv_lshl_add_u32 v68, v70, 4, v68\nv_lshlrev_b32 v68, 10, v68\nv_bfe_u32 v69, v0, 4, 2\nv_lshl_add_u32 v70, v69, 3, v68')
    order = [('B', 0), ('A', 0), ('B', 1), ('B', 2), ('B', 3), ('A', 1), ('A', 2), ('A', 3)]
    seq = [(t, o, i) for t in range(14) for (o, i) in order]
    free = list(range(NSLOT)); loc = {}; pos = {}; st = dict(n=0, done=0)
    def issue():
        while st['n'] < len(seq) and free:
            g = seq[st['n']]; s_ = free.pop(0); loc[g] = SL0 + 4*s_; pos[g] = st['n']; st['n'] += 1
            t, o, i = g; r = loc[g]; sr, so = ('s[12:15]', 80) if o == 'A' else ('s[16:19]', 84)
            a(f'buffer_load_dwordx4 v[{r}:{r+3}], v{VOFF+i}, {sr}, s{so+(t>>2)} offen offset:{(t&3)*1024}')
    def need(g):
        if pos[g] + 1 > st['done']:
            a(f's_waitcnt vmcnt({st["n"] - 1 - pos[g]})'); st['done'] = pos[g] + 1
    issue()
    for t in range(14):
        for mt in range(4):
            for nt in range(4):
                gA, gB = (t, 'A', mt), (t, 'B', nt)
                need(gA) if pos[gA] > pos[gB] else need(gB)
                D = ACC + (mt*4+nt)*4
                C = f'v[{D}:{D+3}]' if t else '0'
                a(f'v_mfma_f32_16x16x32_bf16 v[{D}:{D+3}], v[{loc[gB]}:{loc[gB]+3}], v[{loc[gA]}:{loc[gA]+3}], {C}')
                if nt == 3: free.append((loc[gA]-SL0)//4)
                if mt == 3: free.append((loc[gB]-SL0)//4)
                issue()
    stamp(a, 1)
    a('s_nop 7\ns_nop 7\ns_nop 7')
    for mt in range(4):
        a(f's_cmp_eq_u32 s54, {mt}\ns_cbranch_scc1 L_g2d_sk{mt}')
        a(f's_cmp_gt_u32 s54, {mt}\ns_cselect_b32 s55, 1, 0\ns_sub_u32 s55, s54, s55\ns_add_u32 s55, s55, {mt*3}\ns_lshl_b32 s55, s55, 12\nv_add_u32 v69, s55, v71')
        for nt in range(4):
            D = ACC + (mt*4+nt)*4
            a(f'ds_write_b128 v69, v[{D}:{D+3}] offset:{nt*1024}')
        a.label(f'L_g2d_sk{mt}')
    a('s_mul_i32 s55, s54, 0x3000\nv_add_u32 v69, s55, v71')
    a('s_lshl_b32 s52, s46, 16\ns_lshl_b32 s53, s47, 7\ns_add_u32 s52, s52, s53')
    act_consts(a)
    a('s_waitcnt lgkmcnt(0)\ns_barrier')
    R = SL0
    for r in range(3):
        for nt in range(4):
            a(f'ds_read_b128 v[{R+(r*4+nt)*4}:{R+(r*4+nt)*4+3}], v69 offset:{r*4096+nt*1024}')
    for w in range(4):
        a(f's_cmp_lg_u32 s54, {w}\ns_cbranch_scc1 L_g2d_e{w}')
        for r in range(3):
            a(f's_waitcnt lgkmcnt({8-4*r})')
            for nt in range(4):
                D = ACC + (w*4+nt)*4; S = R+(r*4+nt)*4
                a(f'v_pk_add_f32 v[{D}:{D+1}], v[{D}:{D+1}], v[{S}:{S+1}]\nv_pk_add_f32 v[{D+2}:{D+3}], v[{D+2}:{D+3}], v[{S+2}:{S+3}]')
        items = []
        for nt in range(4):
            D = ACC + (w*4+nt)*4
            items += [(D, None, D), (D+2, None, D+1)]
        act_block(a, items, 128, False)
        for nt in range(4):
            D = ACC + (w*4+nt)*4
            a(f'buffer_store_dwordx2 v[{D}:{D+1}], v70, s[24:27], s52 offen offset:{nt*32}' + (' sc0 sc1' if MERGE else ''))
        if MERGE: signal(a, 's54')
        if os.environ.get('DBGT'): a('s_waitcnt vmcnt(0)')
        stamp(a, 2); a('s_waitcnt lgkmcnt(0)'); stamp_flush(a, 3, 's3')
        a('s_endpgm')
        a.label(f'L_g2d_e{w}')

def gen_gemm2d():
    a = Asm(); N = 'gemm2_kernel'
    a.raw(f'.globl {N}\n.p2align 8\n.type {N},@function\n{N}:')
    a('s_mov_b32 s3, s2'); stamp(a, 0)
    a(f's_cmp_ge_u32 s2, {769 if MERGE else 513}\ns_cbranch_scc1 L_g2_done\ns_cmp_ge_u32 s2, 513\ns_cbranch_scc1 L_g2_fin\ns_cmp_ge_u32 s2, 256\ns_cbranch_scc1 L_g2_cols')
    a('s_load_dwordx2 s[10:11], s[0:1], 72')
    a('s_and_b32 s46, s2, 3\ns_lshl_b32 s46, s46, 3\ns_bfe_u32 s47, s2, 0x30003\ns_add_u32 s46, s46, s47')
    a('s_bfe_u32 s47, s2, 0x10002\ns_lshl_b32 s47, s47, 2\ns_lshr_b32 s48, s2, 6\ns_add_u32 s47, s47, s48')
    a('s_waitcnt lgkmcnt(0)')
    srd(a, 12, 10, 11, SZ_H, OFF_H); srd(a, 16, 10, 11, SZ_WDT, OFF_WDT); srd(a, 24, 10, 11, SZ_G, OFF_G)
    gemm2d_body(a)
    a.label('L_g2_done'); a('s_endpgm')
    import k_cols
    a.label('L_g2_cols')
    a('s_setprio 3\ns_sub_u32 s2, s2, 256\nv_readfirstlane_b32 s98, v0\ns_lshr_b32 s98, s98, 6')
    k_cols.cols_body(a)
    if MERGE: signal(a, 's98')
    stamp(a, 2); a('s_waitcnt lgkmcnt(0)'); stamp_flush(a, 3, 's3')
    a('s_endpgm')
    a.label('L_g2_fin')
    a('s_sub_u32 s2, s2, 513')
    import k_final
    k_final.final_body(a, waiter(1024, True), waiter(0, False))
    a('s_endpgm')
    return a.text(), kernel_desc(N, 256), f'; @launch kernel={N} grid=({769 if MERGE else 513},1,1) block=(256,1,1) lds=65536'
```

```python
from common import *
def tw_rows(a, lane, TW1, TW2, t):
    a(f'v_lshrrev_b32 v{t}, 3, v{lane}')
    a(f'v_cvt_f32_u32 v{t}, v{t}')
    a(f'v_mul_f32 v{t}, 0x{f2u(-1/64):x}, v{t}')
    for k0 in range(1, 8):
        a(f'v_mul_f32 v{t+1}, 0x{f2u(float(k0)):x}, v{t}')
        sincos(a, TW1+2*k0, t+1)
    a(f'v_and_b32 v{t}, 7, v{lane}')
    a(f'v_lshrrev_b32 v{t+1}, 3, v{lane}')
    a(f'v_mul_u32_u24 v{t+2}, v{t}, v{t+1}')
    a(f'v_cvt_f32_u32 v{t+2}, v{t+2}')
    a(f'v_cvt_f32_u32 v{t}, v{t}')
    a(f'v_mul_f32 v{t+2}, 0x{f2u(-1/512):x}, v{t+2}')
    a(f'v_mul_f32 v{t}, 0x{f2u(-1/64):x}, v{t}')
    for k1 in range(8):
        a(f'v_mov_b32 v{t+3}, 0x{f2u(float(k1)):x}')
        a(f'v_fma_f32 v{t+1}, v{t}, v{t+3}, v{t+2}')
        sincos(a, TW2+2*k1, t+1)

def gen_rows():
    a = Asm()
    N = 'rows_kernel'
    a.raw(f'.globl {N}\n.p2align 8\n.type {N},@function\n{N}:')
    a(f's_cmp_ge_u32 s2, 480\ns_cbranch_scc1 L_rows_done\ns_cmp_ge_u32 s2, 256\ns_cbranch_scc1 L_rows_wdt')
    a('s_load_dwordx2 s[4:5], s[0:1], 0\ns_load_dwordx2 s[6:7], s[0:1], 8\ns_load_dwordx2 s[8:9], s[0:1], 16\ns_load_dwordx2 s[10:11], s[0:1], 72')
    stamp(a, 0)
    a('v_and_b32 v1, 63, v0\nv_lshrrev_b32 v2, 6, v0')
    a('s_lshl_b32 s40, s2, 3')
    a('v_lshlrev_b32 v3, 1, v2\nv_add_u32 v3, s40, v3')
    a('v_lshlrev_b32 v4, 10, v3\nv_lshl_add_u32 v4, v1, 1, v4')
    a('v_mul_u32_u24 v5, 0x202, v3\nv_lshl_add_u32 v5, v1, 1, v5')
    a(f's_mov_b32 s36, 0x{f2u(math.sqrt(0.5)):x}')
    a('s_waitcnt lgkmcnt(0)')
    srd(a, 12, 4, 5, 2048*512*2)
    srd(a, 16, 6, 7, 2048*257*2)
    srd(a, 20, 8, 9, 2048*257*2)
    srd(a, 24, 10, 11, SZ_SPEC, OFF_SPEC)
    srd(a, 28, 10, 11, SZ_WT, OFF_WT)
    srd(a, 32, 10, 11, SZ_XN, OFF_XN)
    D = 8
    WL = 24
    T = 44; U = 60
    TW1 = 68; TW2 = 84
    tmp = 100
    for r in range(8):
        a(f'buffer_load_ushort v{D+2*r}, v4, s[12:15], 0 offen offset:{r*128}')
        a(f'buffer_load_ushort v{D+2*r+1}, v4, s[12:15], 0 offen offset:{1024+r*128}')
    for r in range(5):
        a(f'buffer_load_ushort v{WL+4*r}, v5, s[16:19], 0 offen offset:{r*128}')
        a(f'buffer_load_ushort v{WL+4*r+1}, v5, s[20:23], 0 offen offset:{r*128}')
        a(f'buffer_load_ushort v{WL+4*r+2}, v5, s[16:19], 0 offen offset:{514+r*128}')
        a(f'buffer_load_ushort v{WL+4*r+3}, v5, s[20:23], 0 offen offset:{514+r*128}')
    tw_rows(a, 1, TW1, TW2, tmp)
    WB = 104
    a('v_mul_u32_u24 v125, 5120, v2')
    a('v_lshl_add_u32 v120, v1, 3, v125')
    a('v_lshrrev_b32 v126, 3, v1\nv_and_b32 v127, 7, v1')
    a('v_mul_u32_u24 v128, 72, v126\nv_add_u32 v128, v128, v127\nv_lshl_add_u32 v121, v128, 3, v125')
    a('v_mul_u32_u24 v128, 9, v126\nv_add_u32 v128, v128, v127\nv_lshl_add_u32 v122, v128, 3, v125')
    a('v_mul_u32_u24 v128, 72, v126\nv_mul_u32_u24 v129, 9, v127\nv_add_u32 v128, v128, v129\nv_lshl_add_u32 v123, v128, 3, v125')
    a('v_sub_u32 v128, 64, v1\nv_lshl_add_u32 v124, v128, 3, v125')
    a('s_waitcnt vmcnt(20)')
    stamp(a, 1)
    for i in range(16):
        a(f'v_lshlrev_b32 v{D+i}, 16, v{D+i}')
    S0, S1 = tmp, tmp+1
    Q0, Q1 = tmp+2, tmp+3
    for (s, o) in ((S0, 0), (S1, 1)):
        a(f'v_add_f32 v{s}, v{D+o}, v{D+2+o}')
        for r in range(2, 8):
            a(f'v_add_f32 v{s}, v{s}, v{D+2*r+o}')
    allreduce_add(a, S0, tmp+4); allreduce_add(a, S1, tmp+5)
    a(f'v_mul_f32 v{S0}, 0x{f2u(1/512):x}, v{S0}\nv_mul_f32 v{S1}, 0x{f2u(1/512):x}, v{S1}')
    for (q, s, o) in ((Q0, S0, 0), (Q1, S1, 1)):
        for r in range(8):
            a(f'v_sub_f32 v{T+r}, v{D+2*r+o}, v{s}')
        a(f'v_mul_f32 v{q}, v{T}, v{T}')
        for r in range(1, 8):
            a(f'v_fma_f32 v{q}, v{T+r}, v{T+r}, v{q}')
    allreduce_add(a, Q0, tmp+4); allreduce_add(a, Q1, tmp+5)
    a(f'v_mul_f32 v{Q0}, 0x{f2u(1/512):x}, v{Q0}\nv_mul_f32 v{Q1}, 0x{f2u(1/512):x}, v{Q1}')
    round_bf16_pair(a, Q0, Q1, tmp+4)
    round_bf16_pair(a, S0, S1, tmp+4)
    a(f'v_add_f32 v{Q0}, 0x{f2u(1e-5):x}, v{Q0}\nv_add_f32 v{Q1}, 0x{f2u(1e-5):x}, v{Q1}')
    round_bf16_pair(a, Q0, Q1, tmp+4)
    a(f'v_sqrt_f32 v{Q0}, v{Q0}\nv_sqrt_f32 v{Q1}, v{Q1}\ns_nop 0')
    round_bf16_pair(a, Q0, Q1, tmp+4)
    R0, R1 = tmp+6, tmp+7
    a(f'v_rcp_f32 v{R0}, v{Q0}\nv_rcp_f32 v{R1}, v{Q1}')
    for i in range(16):
        s = S0 if i % 2 == 0 else S1
        a(f'v_sub_f32 v{D+i}, v{D+i}, v{s}')
    for r in range(8):
        round_bf16_pair(a, D+2*r, D+2*r+1, tmp+4)
    for i in range(16):
        rr = R0 if i % 2 == 0 else R1; q = Q0 if i % 2 == 0 else Q1
        a(f'v_mul_f32 v{T}, v{D+i}, v{rr}')
        a(f'v_fma_f32 v{T+1}, -v{T}, v{q}, v{D+i}')
        a(f'v_fma_f32 v{D+i}, v{T+1}, v{rr}, v{T}')
    for r in range(8):
        round_bf16_pair(a, D+2*r, D+2*r+1, tmp+4)
    for r in range(8):
        a(f'buffer_store_short_d16_hi v{D+2*r}, v4, s[32:35], 0 offen offset:{r*128}')
        a(f'buffer_store_short_d16_hi v{D+2*r+1}, v4, s[32:35], 0 offen offset:{1024+r*128}')
    stamp(a, 2)
    X = [D+2*r for r in range(8)]
    r8(a, X, T, U, 36, False)
    for k0 in range(1, 8):
        cmul_tw(a, X[k0], TW1+2*k0, tmp+4, False)
    for k0 in range(8):
        a(f'ds_write_b64 v120, v[{X[k0]}:{X[k0]+1}] offset:{k0*576}')
    a('s_waitcnt lgkmcnt(0)')
    for n1 in range(8):
        a(f'ds_read_b64 v[{X[n1]}:{X[n1]+1}], v121 offset:{n1*64}')
    a('s_waitcnt lgkmcnt(0)')
    r8(a, X, T, U, 36, False)
    for k1 in range(8):
        cmul_tw(a, X[k1], TW2+2*k1, tmp+4, False)
    for k1 in range(8):
        a(f'ds_write_b64 v122, v[{X[k1]}:{X[k1]+1}] offset:{k1*576}')
    a('s_waitcnt lgkmcnt(0)')
    for n0 in range(8):
        a(f'ds_read_b64 v[{X[n0]}:{X[n0]+1}], v123 offset:{n0*8}')
    a('s_waitcnt lgkmcnt(0)')
    r8(a, X, T, U, 36, False)
    a('s_waitcnt vmcnt(16)')
    for r in range(5):
        a(f'v_lshl_or_b32 v{WL+4*r}, v{WL+4*r+1}, 16, v{WL+4*r}')
        a(f'v_lshl_or_b32 v{WL+4*r+1}, v{WL+4*r+3}, 16, v{WL+4*r+2}')
    for r in range(4, 8):
        a(f'ds_write_b64 v120, v[{X[r]}:{X[r]+1}] offset:{(r-4)*512}')
    a(f'ds_write_b64 v120, v[{X[0]}:{X[0]+1}] offset:{2048}')
    a('s_waitcnt lgkmcnt(0)')
    M = T
    for r in range(4):
        a(f'ds_read_b64 v[{M+2*r}:{M+2*r+1}], v124 offset:{(3-r)*512}')
    a('v_lshlrev_b32 v128, 13, v1\nv_lshl_add_u32 v128, v3, 2, v128')
    a('v_lshlrev_b32 v129, 14, v1\nv_lshl_add_u32 v129, v3, 3, v129')
    a('s_waitcnt lgkmcnt(0)')
    stamp(a, 3)
    O = TW1
    def sep(o, z, m):
        a(f'v_add_f32 v{o}, v{z}, v{m}\nv_sub_f32 v{o+1}, v{z+1}, v{m+1}')
        a(f'v_add_f32 v{o+2}, v{z+1}, v{m+1}\nv_sub_f32 v{o+3}, v{m}, v{z}')
    for r in range(4):
        sep(O+4*r, X[r], M+2*r)
        a(f's_mov_b32 s41, 0x{r*64*16384:x}')
        a(f'buffer_store_dwordx4 v[{O+4*r}:{O+4*r+3}], v129, s[24:27], s41 offen')
        a(f's_mov_b32 s42, 0x{r*64*8192:x}')
        a(f'buffer_store_dwordx2 v[{WL+4*r}:{WL+4*r+1}], v128, s[28:31], s42 offen')
    sep(O+16, X[4], X[4])
    a('v_cmp_eq_u32 vcc, 0, v1\ns_and_saveexec_b64 s[44:45], vcc')
    a(f's_mov_b32 s41, 0x{256*16384:x}')
    a(f'buffer_store_dwordx4 v[{O+16}:{O+19}], v129, s[24:27], s41 offen')
    a(f's_mov_b32 s42, 0x{256*8192:x}')
    a(f'buffer_store_dwordx2 v[{WL+16}:{WL+17}], v128, s[28:31], s42 offen')
    if os.environ.get('DBGT'): a('s_waitcnt vmcnt(0)')
    stamp(a, 4); a('s_waitcnt lgkmcnt(0)'); stamp_flush(a, 5)
    a.label('L_rows_done')
    a('s_endpgm')
    a.label('L_rows_wdt')
    import k_gemm2d
    a('s_sub_u32 s2, s2, 256')
    k_gemm2d.wdt_body(a, 's2')
    return a.text(), kernel_desc(N, 132), f'; @launch kernel={N} grid=(480,1,1) block=(256,1,1) lds={4*5120}'
```

```python
from common import *
from k_gemm import act_block, act_consts
OFF_WDT = 0x1400000
SZ_WDT = 512*3584
OFF_CNT = 0x1800000
def cnt_base(a):
    a(f's_load_dwordx2 s[56:57], s[0:1], 72\ns_waitcnt lgkmcnt(0)\ns_add_u32 s56, s56, 0x{OFF_CNT:x}\ns_addc_u32 s57, s57, 0')
_sn = [0]
def signal(a, wsg):
    n = _sn[0]; _sn[0] += 1
    a(f's_waitcnt vmcnt(0)\ns_barrier\ns_cmp_lg_u32 {wsg}, 0\ns_cbranch_scc1 L_sg{n}')
    cnt_base(a)
    a('s_lshl_b32 s58, s3, 2\ns_mov_b64 exec, 1\nv_mov_b32 v1, 1\nv_mov_b32 v2, s58\nglobal_store_dword v2, v1, s[56:57] sc0 sc1')
    a.label(f'L_sg{n}')
_wn = [0]
def waiter(off, extra):
    def f(a):
        n = _wn[0]; _wn[0] += 1
        cnt_base(a)
        a(f's_mov_b32 s58, 0x40000\nv_lshlrev_b32 v131, 4, v1\nv_readfirstlane_b32 s59, v2\ns_cmp_lg_u32 s59, 0\ns_cbranch_scc1 L_wd{n}')
        a.label(f'L_w{n}')
        a(f'global_load_dwordx4 v[126:129], v131, s[56:57] offset:{off} sc0 sc1')
        if extra: a(f'global_load_dword v130, v131, s[56:57] offset:{off+1024} sc0 sc1')
        a('s_waitcnt vmcnt(0)\nv_min_u32 v126, v126, v127\nv_min_u32 v128, v128, v129\nv_min_u32 v126, v126, v128')
        if extra: a('v_readfirstlane_b32 s59, v130\nv_min_u32 v126, s59, v126')
        a(f'v_cmp_eq_u32 vcc, 0, v126\ns_cmp_eq_u64 vcc, 0\ns_cbranch_scc1 L_wd{n}\ns_sub_u32 s58, s58, 1\ns_cmp_eq_u32 s58, 0\ns_cbranch_scc1 L_wd{n}\ns_sleep 8\ns_branch L_w{n}')
        a.label(f'L_wd{n}')
        a('s_barrier')
    return f

def wdt_body(a, jreg):
    a('s_load_dwordx2 s[10:11], s[0:1], 72\ns_load_dwordx2 s[4:5], s[0:1], 48')
    a(f's_lshr_b32 s46, {jreg}, 3\ns_and_b32 s47, {jreg}, 7')
    a('s_lshl_b32 s48, s46, 16\ns_lshl_b32 s49, s47, 7\ns_add_u32 s48, s48, s49\ns_add_u32 s50, s48, 0x4000')
    a('s_mul_i32 s51, s47, 0x38000\ns_lshl_b32 s49, s46, 11\ns_add_u32 s51, s51, s49')
    a('s_mov_b32 s52, 0x05040100\ns_mov_b32 s53, 0x07060302')
    a('v_and_b32 v1, 7, v0\nv_bfe_u32 v2, v0, 3, 2\nv_bfe_u32 v5, v0, 5, 2\nv_lshrrev_b32 v6, 7, v0')
    a('v_lshlrev_b32 v3, 15, v6\nv_lshl_add_u32 v3, v2, 12, v3\nv_lshl_add_u32 v3, v5, 5, v3\nv_lshl_add_u32 v3, v1, 2, v3')
    a('v_mul_u32_u24 v4, 0xe000, v5\nv_lshl_add_u32 v4, v6, 10, v4\nv_lshl_add_u32 v4, v2, 8, v4\nv_lshl_add_u32 v4, v1, 5, v4')
    a('s_waitcnt lgkmcnt(0)')
    srd(a, 12, 4, 5, 1792*1024); srd(a, 16, 10, 11, SZ_WDT, OFF_WDT)
    srd(a, 20, 10, 11, 4096, OFF_CNT)
    a(f's_cmp_lg_u32 {jreg}, 0\ns_cbranch_scc1 L_wdt_nz\nv_mov_b32 v30, 0\nv_mov_b32 v31, 0\nv_mov_b32 v32, 0\nv_mov_b32 v33, 0\nv_lshlrev_b32 v34, 4, v0\nbuffer_store_dwordx4 v[30:33], v34, s[20:23], 0 offen')
    a.label('L_wdt_nz')
    for i in range(8):
        a(f'buffer_load_dword v{10+i}, v3, s[12:15], {"s48" if i < 4 else "s50"} offen offset:{(i%4)*1024}')
    a('s_waitcnt vmcnt(0)')
    for c, sel in ((0, 's52'), (1, 's53')):
        for p in range(4):
            a(f'v_perm_b32 v{20+4*c+p}, v{11+2*p}, v{10+2*p}, {sel}')
    a('buffer_store_dwordx4 v[20:23], v4, s[16:19], s51 offen')
    a('buffer_store_dwordx4 v[24:27], v4, s[16:19], s51 offen offset:16')
    a('s_endpgm')

def gemm2d_body(a, NSLOT=46):
    ACC, VOFF, SL0 = 0, 64, 72
    for j in range(4):
        a(f's_mul_i32 s{80+j}, s46, 0x38000\ns_mul_i32 s{84+j}, s47, 0x38000')
        if j: a(f's_add_u32 s{80+j}, s{80+j}, {j*4096}\ns_add_u32 s{84+j}, s{84+j}, {j*4096}')
    a('v_lshrrev_b32 v70, 6, v0\nv_mul_u32_u24 v69, 0x3800, v70\nv_and_b32 v71, 63, v0\nv_lshlrev_b32 v71, 4, v71\nv_add_u32 v64, v71, v69')
    for i in range(1, 4): a(f'v_add_u32 v{VOFF+i}, 0x{i*56*1024:x}, v64')
    a('v_readfirstlane_b32 s54, v70')
    a('v_and_b32 v68, 15, v0\nv_lshl_add_u32 v68, v70, 4, v68\nv_lshlrev_b32 v68, 10, v68\nv_bfe_u32 v69, v0, 4, 2\nv_lshl_add_u32 v70, v69, 3, v68')
    order = [('B', 0), ('A', 0), ('B', 1), ('B', 2), ('B', 3), ('A', 1), ('A', 2), ('A', 3)]
    seq = [(t, o, i) for t in range(14) for (o, i) in order]
    free = list(range(NSLOT)); loc = {}; pos = {}; st = dict(n=0, done=0)
    def issue():
        while st['n'] < len(seq) and free:
            g = seq[st['n']]; s_ = free.pop(0); loc[g] = SL0 + 4*s_; pos[g] = st['n']; st['n'] += 1
            t, o, i = g; r = loc[g]; sr, so = ('s[12:15]', 80) if o == 'A' else ('s[16:19]', 84)
            a(f'buffer_load_dwordx4 v[{r}:{r+3}], v{VOFF+i}, {sr}, s{so+(t>>2)} offen offset:{(t&3)*1024}')
    def need(g):
        if pos[g] + 1 > st['done']:
            a(f's_waitcnt vmcnt({st["n"] - 1 - pos[g]})'); st['done'] = pos[g] + 1
    issue()
    for t in range(14):
        for mt in range(4):
            for nt in range(4):
                gA, gB = (t, 'A', mt), (t, 'B', nt)
                need(gA) if pos[gA] > pos[gB] else need(gB)
                D = ACC + (mt*4+nt)*4
                C = f'v[{D}:{D+3}]' if t else '0'
                a(f'v_mfma_f32_16x16x32_bf16 v[{D}:{D+3}], v[{loc[gB]}:{loc[gB]+3}], v[{loc[gA]}:{loc[gA]+3}], {C}')
                if nt == 3: free.append((loc[gA]-SL0)//4)
                if mt == 3: free.append((loc[gB]-SL0)//4)
                issue()
    stamp(a, 1)
    a('s_nop 7\ns_nop 7\ns_nop 7')
    for mt in range(4):
        a(f's_cmp_eq_u32 s54, {mt}\ns_cbranch_scc1 L_g2d_sk{mt}')
        a(f's_cmp_gt_u32 s54, {mt}\ns_cselect_b32 s55, 1, 0\ns_sub_u32 s55, s54, s55\ns_add_u32 s55, s55, {mt*3}\ns_lshl_b32 s55, s55, 12\nv_add_u32 v69, s55, v71')
        for nt in range(4):
            D = ACC + (mt*4+nt)*4
            a(f'ds_write_b128 v69, v[{D}:{D+3}] offset:{nt*1024}')
        a.label(f'L_g2d_sk{mt}')
    a('s_mul_i32 s55, s54, 0x3000\nv_add_u32 v69, s55, v71')
    a('s_lshl_b32 s52, s46, 16\ns_lshl_b32 s53, s47, 7\ns_add_u32 s52, s52, s53')
    act_consts(a)
    a('s_waitcnt lgkmcnt(0)\ns_barrier')
    R = SL0
    for r in range(3):
        for nt in range(4):
            a(f'ds_read_b128 v[{R+(r*4+nt)*4}:{R+(r*4+nt)*4+3}], v69 offset:{r*4096+nt*1024}')
    for w in range(4):
        a(f's_cmp_lg_u32 s54, {w}\ns_cbranch_scc1 L_g2d_e{w}')
        for r in range(3):
            a(f's_waitcnt lgkmcnt({8-4*r})')
            for nt in range(4):
                D = ACC + (w*4+nt)*4; S = R+(r*4+nt)*4
                a(f'v_pk_add_f32 v[{D}:{D+1}], v[{D}:{D+1}], v[{S}:{S+1}]\nv_pk_add_f32 v[{D+2}:{D+3}], v[{D+2}:{D+3}], v[{S+2}:{S+3}]')
        items = []
        for nt in range(4):
            D = ACC + (w*4+nt)*4
            items += [(D, None, D), (D+2, None, D+1)]
        act_block(a, items, 128, False)
        for nt in range(4):
            D = ACC + (w*4+nt)*4
            a(f'buffer_store_dwordx2 v[{D}:{D+1}], v70, s[24:27], s52 offen offset:{nt*32} sc0 sc1')
        if MERGE: signal(a, 's54')
        if os.environ.get('DBGT'): a('s_waitcnt vmcnt(0)')
        stamp(a, 2); a('s_waitcnt lgkmcnt(0)'); stamp_flush(a, 3, 's3')
        a('s_endpgm')
        a.label(f'L_g2d_e{w}')

MERGE = True
def gen_gemm2d():
    a = Asm(); N = 'gemm2_kernel'
    a.raw(f'.globl {N}\n.p2align 8\n.type {N},@function\n{N}:')
    a('s_mov_b32 s3, s2'); stamp(a, 0)
    a(f's_cmp_ge_u32 s2, {769 if MERGE else 513}\ns_cbranch_scc1 L_g2_done\ns_cmp_ge_u32 s2, 513\ns_cbranch_scc1 L_g2_fin\ns_cmp_ge_u32 s2, 256\ns_cbranch_scc1 L_g2_cols')
    a('s_load_dwordx2 s[10:11], s[0:1], 72')
    a('s_and_b32 s46, s2, 3\ns_lshl_b32 s46, s46, 3\ns_bfe_u32 s47, s2, 0x30003\ns_add_u32 s46, s46, s47')
    a('s_bfe_u32 s47, s2, 0x10002\ns_lshl_b32 s47, s47, 2\ns_lshr_b32 s48, s2, 6\ns_add_u32 s47, s47, s48')
    a('s_waitcnt lgkmcnt(0)')
    srd(a, 12, 10, 11, SZ_H, OFF_H); srd(a, 16, 10, 11, SZ_WDT, OFF_WDT); srd(a, 24, 10, 11, SZ_G, OFF_G)
    gemm2d_body(a)
    a.label('L_g2_done'); a('s_endpgm')
    import k_cols
    a.label('L_g2_cols')
    a('s_setprio 3\ns_sub_u32 s2, s2, 256\nv_readfirstlane_b32 s98, v0\ns_lshr_b32 s98, s98, 6')
    k_cols.cols_body(a)
    if MERGE: signal(a, 's98')
    stamp(a, 2); a('s_waitcnt lgkmcnt(0)'); stamp_flush(a, 3, 's3')
    a('s_endpgm')
    a.label('L_g2_fin')
    a('s_sub_u32 s2, s2, 513')
    import k_final
    k_final.final_body(a, waiter(1024, True), waiter(0, False))
    a('s_endpgm')
    return a.text(), kernel_desc(N, 256), f'; @launch kernel={N} grid=({769 if MERGE else 513},1,1) block=(256,1,1) lds=65536'
```

```python
from common import *
def weave(a, mf, rd, oth, span):
    n = len(mf); nr = max(1, int(n*span)); k = 0; k2 = 0
    for i, m in enumerate(mf):
        a(m)
        tgt = min(len(rd), (len(rd)*(i+1) + nr - 1)//nr)
        while k < tgt:
            for l in rd[k]: a(l)
            k += 1
        tgt = (len(oth)*(i+1) + n - 1)//n
        while k2 < tgt:
            for l in oth[k2]: a(l)
            k2 += 1

def silu_pair(a, x0, x1, t):
    a(f'v_mul_f32 v{t}, 0x{f2u(-1.4426950408889634):x}, v{x0}\nv_mul_f32 v{t+1}, 0x{f2u(-1.4426950408889634):x}, v{x1}')
    a(f'v_exp_f32 v{t}, v{t}\nv_exp_f32 v{t+1}, v{t+1}\ns_nop 0')
    a(f'v_add_f32 v{t}, 1.0, v{t}\nv_add_f32 v{t+1}, 1.0, v{t+1}')
    a(f'v_rcp_f32 v{t}, v{t}\nv_rcp_f32 v{t+1}, v{t+1}\ns_nop 0')
    a(f'v_mul_f32 v{x0}, v{x0}, v{t}\nv_mul_f32 v{x1}, v{x1}, v{t+1}')

def act_block(a, items, T, swiglu):
    def each(f):
        for n, it in enumerate(items): f(it, T+2*n)
    if not swiglu:
        pass
    each(lambda it, t: a(f'v_cvt_pk_bf16_f32 v{t}, v{it[0]}, v{it[0]+1}'))
    each(lambda it, t: a(f'v_lshlrev_b32 v{it[0]}, 16, v{t}\nv_and_b32 v{it[0]+1}, 0xffff0000, v{t}'))
    each(lambda it, t: a(f'v_pk_mul_f32 v[{t}:{t+1}], v[{it[0]}:{it[0]+1}], s[60:61]'))
    each(lambda it, t: a(f'v_exp_f32 v{t}, v{t}\nv_exp_f32 v{t+1}, v{t+1}'))
    each(lambda it, t: a(f'v_pk_add_f32 v[{t}:{t+1}], v[{t}:{t+1}], s[62:63]'))
    each(lambda it, t: a(f'v_rcp_f32 v{t}, v{t}\nv_rcp_f32 v{t+1}, v{t+1}'))
    each(lambda it, t: a(f'v_pk_mul_f32 v[{it[0]}:{it[0]+1}], v[{it[0]}:{it[0]+1}], v[{t}:{t+1}]'))
    if not swiglu:
        each(lambda it, t: a(f'v_cvt_pk_bf16_f32 v{it[2]}, v{it[0]}, v{it[0]+1}'))
        return
    each(lambda it, t: a(f'v_cvt_pk_bf16_f32 v{t}, v{it[0]}, v{it[0]+1}\nv_cvt_pk_bf16_f32 v{t+1}, v{it[1]}, v{it[1]+1}'))
    each(lambda it, t: a(f'v_lshlrev_b32 v{it[0]}, 16, v{t}\nv_and_b32 v{it[0]+1}, 0xffff0000, v{t}'))
    each(lambda it, t: a(f'v_lshlrev_b32 v{it[1]}, 16, v{t+1}\nv_and_b32 v{it[1]+1}, 0xffff0000, v{t+1}'))
    each(lambda it, t: a(f'v_pk_mul_f32 v[{it[0]}:{it[0]+1}], v[{it[0]}:{it[0]+1}], v[{it[1]}:{it[1]+1}]'))
    each(lambda it, t: a(f'v_cvt_pk_bf16_f32 v{it[2]}, v{it[0]}, v{it[0]+1}'))

def act_consts(a):
    a(f's_mov_b32 s60, 0x{f2u(-1.4426950408889634):x}\ns_mov_b32 s61, 0x{f2u(-1.4426950408889634):x}\ns_mov_b32 s62, 1.0\ns_mov_b32 s63, 1.0')

def gemm_body(a, c):
    BM, NP, K, NS = c['BM'], c['NP'], c['K'], c['NS']
    pA, pB = c['pitchA'], c['pitchB']
    MT = c['MT']; frags = c['frags']; units = c['units']
    NSTG = K//64; SA = BM*128; SB = 8192; SS = SA + NP*SB
    ACC = c['ACC']; AF = c['AF']; BF = c['BF']
    a('v_and_b32 v1, 63, v0\nv_lshrrev_b32 v2, 6, v0')
    a('s_nop 0\nv_readfirstlane_b32 s50, v2')
    a('s_nop 3\ns_lshl_b32 s51, s50, 10')
    t = c['tmp']
    a(f'v_lshrrev_b32 v{t}, 3, v1\nv_and_b32 v{t+1}, 7, v1\nv_xor_b32 v{t+2}, v{t+1}, v{t}')
    a(f'v_lshl_add_u32 v{t+3}, v2, 3, v{t}')
    a(f'v_mul_u32_u24 v3, 0x{pA:x}, v{t+3}\nv_lshl_add_u32 v3, v{t+2}, 4, v3')
    a(f'v_and_b32 v{t+2}, 2, v{t}\nv_and_b32 v{t+4}, 1, v2\nv_lshl_or_b32 v{t+2}, v{t+4}, 2, v{t+2}\nv_xor_b32 v{t+2}, v{t+1}, v{t+2}')
    a(f'v_mul_u32_u24 v4, 0x{pB:x}, v{t+3}\nv_lshl_add_u32 v4, v{t+2}, 4, v4')
    BFR = c.get('bfrag')
    if BFR:
        a(f'v_lshrrev_b32 v{t+2}, 1, v2\nv_lshlrev_b32 v4, 14, v{t+2}\nv_and_b32 v{t+2}, 1, v2\nv_lshl_add_u32 v4, v{t+2}, 10, v4\nv_lshl_add_u32 v4, v1, 4, v4')
    def dma(s):
        L = []
        b = s % NS
        for j in range(BM//32):
            L.append([f's_add_u32 m0, s51, 0x{b*SS + j*4096:x}', f's_add_u32 s52, {c["soffA"]}, 0x{s*128 + 32*j*pA:x}',
                      f'buffer_load_dwordx4 v3, s[12:15], s52 offen lds'])
        for p in range(NP):
            for j in range(2):
                sr = c['bsrd'][p]
                L.append([f's_add_u32 m0, s51, 0x{b*SS + SA + p*SB + j*4096:x}',
                          (f's_add_u32 s52, {c["soffB"]}, 0x{(s*64 + 32*j)*pB + c["bcol"][p]:x}' if not BFR else
                           f's_add_u32 s52, {c["soffB"]}, 0x{(p&1)*65536 + s*2048 + j*32768:x}'),
                          f'buffer_load_dwordx4 v4, s[{sr}:{sr+3}], s52 offen lds'])
        return L
    ND = BM//32 + 2*NP
    import os
    VW = 0 if os.environ.get('VW0') else ND*(NS-2)
    for s_ in range(NS-1):
        for g in dma(s_):
            for l in g: a(l)
    a(f'v_lshrrev_b32 v{t+5}, 1, v2\nv_and_b32 v{t+6}, 1, v2')
    a(f'v_and_b32 v{t}, 15, v1\nv_mul_u32_u24 v{t+1}, {MT*16}, v{t+5}\nv_add_u32 v{t}, v{t}, v{t+1}\nv_lshlrev_b32 v{t}, 7, v{t}')
    a(f'v_lshrrev_b32 v{t+1}, 4, v1\nv_and_b32 v{t+2}, 7, v1\nv_xor_b32 v{t+1}, v{t+1}, v{t+2}\nv_lshl_add_u32 v5, v{t+1}, 4, v{t}')
    a('v_xor_b32 v6, 64, v5')
    nts = c['nts']
    a(f'v_lshrrev_b32 v{t}, 4, v1\nv_bfe_u32 v{t+1}, v1, 2, 2\nv_and_b32 v{t+2}, 3, v1')
    a(f'v_lshl_add_u32 v{t+3}, v{t}, 3, v{t+1}\nv_lshlrev_b32 v{t+3}, 7, v{t+3}')
    a(f'v_and_b32 v{t+4}, 2, v{t+1}\nv_and_b32 v{t}, 1, v{t}\nv_lshl_or_b32 v{t+4}, v{t}, 2, v{t+4}')
    a(f'v_and_b32 v{t}, 1, v{t+2}\nv_lshl_add_u32 v{t+3}, v{t}, 3, v{t+3}')
    a(f'v_lshrrev_b32 v{t+2}, 1, v{t+2}')
    a(f'v_add_u32 v{t+3}, 0x{SA:x}, v{t+3}')
    if c['wn_panel']:
        a(f'v_lshl_add_u32 v{t+3}, v{t+6}, 13, v{t+3}')
    for ts in range(nts):
        if c['wn_panel']: a(f'v_mov_b32 v{t+7}, {2*ts}')
        else: a(f'v_lshlrev_b32 v{t+7}, 2, v{t+6}\nv_add_u32 v{t+7}, {2*ts}, v{t+7}')
        a(f'v_add_u32 v{t+7}, v{t+7}, v{t+2}\nv_xor_b32 v{t+7}, v{t+7}, v{t+4}\nv_lshl_add_u32 v{8+ts}, v{t+7}, 4, v{t+3}')
        if BFR: a(f'v_lshlrev_b32 v{8+ts}, 4, v1\nv_lshl_add_u32 v{8+ts}, v{t+6}, 13, v{8+ts}\nv_add_u32 v{8+ts}, 0x{SA:x}, v{8+ts}')
    NAD = 2 + nts
    base_regs = [5, 6] + [8+i for i in range(nts)]
    R0 = c['ADDR']
    for b in range(NS):
        for i, r in enumerate(base_regs):
            a(f'v_add_u32 v{R0+b*NAD+i}, 0x{b*SS:x}, v{r}')
    seq = [(s, ui) for s in range(NSTG) for ui in range(len(units))]
    NA = c['NA']; NB = max(sum(len(f) for _, f in un) for un in units)
    firstu = {}
    for ui, un in enumerate(units):
        for (u, _) in un: firstu.setdefault(u, ui)
    def areg(s, u, mt): return AF + ((2*s+u) % NA)*MT*4 + mt*4
    def reads(i):
        s, ui = seq[i]; b = s % NS; L = []; slot = 0
        for (u, fl) in units[ui]:
            if firstu[u] == ui:
                for mt in range(MT):
                    r = areg(s, u, mt)
                    L.append([f'ds_read_b128 v[{r}:{r+3}], v{R0+b*NAD+u} offset:{mt*2048}'])
            for fid in fl:
                P, ts = frags[fid]
                r = BF + (i % 2)*NB*4 + slot*4; slot += 1
                if BFR:
                    L.append([f'ds_read_b128 v[{r}:{r+3}], v{R0+b*NAD+2+ts} offset:{P*c["pstride"] + (ts*2+u)*1024}'])
                    continue
                for h in range(2):
                    L.append([f'ds_read_b64_tr_b16 v[{r+2*h}:{r+2*h+1}], v{R0+b*NAD+2+ts} offset:{P*c["pstride"] + (32*u+4*h)*128}'])
        return L
    def mfmas(i):
        s, ui = seq[i]; L = []; slot = 0
        for (u, fl) in units[ui]:
            for fid in fl:
                rb = BF + (i % 2)*NB*4 + slot*4; slot += 1
                for mt in range(MT):
                    ra = areg(s, u, mt); d = ACC + (fid*MT + mt)*4
                    cc = '0' if (s == 0 and u == 0) else f'v[{d}:{d+3}]'
                    L.append(f'v_mfma_f32_16x16x32_bf16 v[{d}:{d+3}], v[{rb}:{rb+3}], v[{ra}:{ra+3}], {cc}')
        return L
    stamp(a, 1)
    a(f's_waitcnt vmcnt({VW})\ns_barrier')
    stamp(a, 2)
    if NS-1 < NSTG:
        for g in dma(NS-1):
            for l in g: a(l)
    for g in reads(0): a(g[0])
    pend = []; per = (ND + len(units) - 1)//len(units) if NS > 2 else ND
    for i in range(len(seq)):
        s, ui = seq[i]
        a('s_waitcnt lgkmcnt(0)')
        if ui == len(units)-1 and s+1 < NSTG:
            assert not pend
            a(f's_waitcnt vmcnt({min(VW, ND*(min(NSTG-1, s+NS-1) - (s+1)))})\ns_barrier')
            if s+NS < NSTG: pend = dma(s+NS)
        oth = pend[:per]; pend = pend[per:]
        rd = reads(i+1) if i+1 < len(seq) else []
        weave(a, mfmas(i), rd, oth, c['span'])
    a('s_nop 7\ns_nop 7')
    stamp(a, 3)

def gen_gemm1():
    a = Asm(); N = 'gemm1_kernel'
    a.raw(f'.globl {N}\n.p2align 8\n.type {N},@function\n{N}:')
    a('s_cmp_ge_u32 s2, 224\ns_cbranch_scc1 L_g1_done')
    stamp(a, 0)
    gemm1_body(a, 's2')
    a('s_waitcnt vmcnt(0) lgkmcnt(0)')
    stamp(a, 4)
    a('s_waitcnt lgkmcnt(0)')
    stamp_flush(a, 5)
    a.label('L_g1_done'); a('s_endpgm')
    return a.text(), kernel_desc(N, 256), f'; @launch kernel={N} grid=(224,1,1) block=(256,1,1) lds={3*49152}'

def gemm1_body(a, wg):
    a('s_load_dwordx2 s[10:11], s[0:1], 72\ns_load_dwordx2 s[4:5], s[0:1], 32\ns_load_dwordx2 s[6:7], s[0:1], 40')
    a(f's_and_b32 s46, {wg}, 3\ns_lshl_b32 s46, s46, 2\ns_bfe_u32 s47, {wg}, 0x20003\ns_add_u32 s46, s46, s47')
    a(f's_bfe_u32 s47, {wg}, 0x10002\ns_mul_i32 s47, s47, 7\ns_lshr_b32 s48, {wg}, 5\ns_add_u32 s47, s47, s48')
    a('s_lshl_b32 s48, s46, 17\ns_lshl_b32 s49, s47, 17')
    a('s_waitcnt lgkmcnt(0)')
    srd(a, 12, 10, 11, SZ_XN, OFF_XN); srd(a, 16, 10, 11, 512*3584, 0x1A00000); srd(a, 20, 10, 11, 512*3584, 0x1C00000); srd(a, 24, 10, 11, SZ_H, OFF_H)
    c = dict(bfrag=True, BM=128, NP=4, K=512, NS=3, pitchA=1024, pitchB=3584, MT=4, frags=[(P, t) for P in range(2) for t in range(4)],
             units=[[(0, [0, 1, 2, 3])], [(0, [4, 5, 6, 7])], [(1, [0, 1, 2, 3])], [(1, [4, 5, 6, 7])]], NA=2, span=0.5, ACC=128, AF=64, BF=96, tmp=40, nts=4, wn_panel=True, ADDR=16,
             soffA='s48', soffB='s49', bsrd=[16, 16, 20, 20], bcol=[0, 128, 0, 128], pstride=16384)
    gemm_body(a, c)
    a('v_lshrrev_b32 v41, 1, v2\nv_mul_u32_u24 v40, 0x38000, v41\nv_and_b32 v41, 1, v2\nv_lshl_add_u32 v40, v41, 11, v40\nv_lshl_add_u32 v40, v1, 4, v40')
    a('s_mul_i32 s52, s46, 0x70000\ns_lshl_b32 s53, s47, 12\ns_add_u32 s52, s52, s53')
    act_consts(a)
    for mt in range(4):
        for tp in range(2):
            items = []
            G0 = 128 + (2*tp*4+mt)*4
            for j, t in enumerate((2*tp, 2*tp+1)):
                G = 128 + (t*4+mt)*4; Uu = 128 + ((4+t)*4+mt)*4
                items += [(G, Uu, G0+2*j), (G+2, Uu+2, G0+2*j+1)]
            act_block(a, items, 44, True)
            a(f's_add_u32 s53, s52, 0x{(mt*56 + tp)*1024:x}')
            a(f'buffer_store_dwordx4 v[{G0}:{G0+3}], v40, s[24:27], s53 offen')
```

```python
from common import *
from k_gemm import act_block, act_consts
OFF_WDT = 0x1400000
SZ_WDT = 512*3584
OFF_CNT = 0x1800000
MERGE = bool(os.environ.get('MERGE'))
def cnt_base(a):
    a(f's_load_dwordx2 s[56:57], s[0:1], 72\ns_waitcnt lgkmcnt(0)\ns_add_u32 s56, s56, 0x{OFF_CNT:x}\ns_addc_u32 s57, s57, 0')
_sn = [0]
def signal(a, wsg):
    n = _sn[0]; _sn[0] += 1
    a(f's_waitcnt vmcnt(0)\ns_barrier\ns_cmp_lg_u32 {wsg}, 0\ns_cbranch_scc1 L_sg{n}')
    cnt_base(a)
    a('s_lshl_b32 s58, s3, 2\ns_mov_b64 exec, 1\nv_mov_b32 v1, 1\nv_mov_b32 v2, s58\nglobal_store_dword v2, v1, s[56:57] sc0 sc1')
    a.label(f'L_sg{n}')
_wn = [0]
def waiter(off, extra):
    def f(a):
        n = _wn[0]; _wn[0] += 1
        cnt_base(a)
        a(f's_mov_b32 s58, 0x40000\nv_lshlrev_b32 v131, 4, v1\nv_readfirstlane_b32 s59, v2\ns_cmp_lg_u32 s59, 0\ns_cbranch_scc1 L_wd{n}')
        a.label(f'L_w{n}')
        a(f'global_load_dwordx4 v[126:129], v131, s[56:57] offset:{off} sc0 sc1')
        if extra: a(f'global_load_dword v130, v131, s[56:57] offset:{off+1024} sc0 sc1')
        a('s_waitcnt vmcnt(0)\nv_min_u32 v126, v126, v127\nv_min_u32 v128, v128, v129\nv_min_u32 v126, v126, v128')
        if extra: a('v_readfirstlane_b32 s59, v130\nv_min_u32 v126, s59, v126')
        a(f'v_cmp_eq_u32 vcc, 0, v126\ns_cmp_eq_u64 vcc, 0\ns_cbranch_scc1 L_wd{n}\ns_sub_u32 s58, s58, 1\ns_cmp_eq_u32 s58, 0\ns_cbranch_scc1 L_wd{n}\ns_sleep 8\ns_branch L_w{n}')
        a.label(f'L_wd{n}')
        a('s_barrier')
    return f

def wdt_body(a, jreg):
    a('s_load_dwordx2 s[10:11], s[0:1], 72\ns_load_dwordx2 s[4:5], s[0:1], 48')
    a(f's_lshr_b32 s46, {jreg}, 3\ns_and_b32 s47, {jreg}, 7')
    a('s_lshl_b32 s48, s46, 16\ns_lshl_b32 s49, s47, 7\ns_add_u32 s48, s48, s49\ns_add_u32 s50, s48, 0x4000')
    a('s_mul_i32 s51, s47, 0x38000\ns_lshl_b32 s49, s46, 11\ns_add_u32 s51, s51, s49')
    a('s_mov_b32 s52, 0x05040100\ns_mov_b32 s53, 0x07060302')
    a('v_and_b32 v1, 7, v0\nv_bfe_u32 v2, v0, 3, 2\nv_bfe_u32 v5, v0, 5, 2\nv_lshrrev_b32 v6, 7, v0')
    a('v_lshlrev_b32 v3, 15, v6\nv_lshl_add_u32 v3, v2, 12, v3\nv_lshl_add_u32 v3, v5, 5, v3\nv_lshl_add_u32 v3, v1, 2, v3')
    a('v_mul_u32_u24 v4, 0xe000, v5\nv_lshl_add_u32 v4, v6, 10, v4\nv_lshl_add_u32 v4, v2, 8, v4\nv_lshl_add_u32 v4, v1, 5, v4')
    a('s_load_dwordx4 s[24:27], s[0:1], 32')
    a('s_waitcnt lgkmcnt(0)')
    srd(a, 12, 4, 5, 1792*1024); srd(a, 16, 10, 11, SZ_WDT, OFF_WDT)
    srd(a, 28, 24, 25, 512*3584); srd(a, 32, 26, 27, 512*3584)
    srd(a, 64, 10, 11, 512*3584, 0x1A00000); srd(a, 68, 10, 11, 512*3584, 0x1C00000)
    a('s_mul_i32 s72, s47, 0x38000\ns_lshl_b32 s73, s46, 7\ns_add_u32 s72, s72, s73')
    for i in range(1, 8): a(f's_add_u32 s{72+i}, s72, {i*3584}')
    a('s_lshl_b32 s80, s46, 16\ns_lshl_b32 s81, s47, 11\ns_add_u32 s80, s80, s81')
    a('v_lshlrev_b32 v36, 5, v6\nv_lshl_add_u32 v36, v2, 3, v36\nv_mul_u32_u24 v36, 0xe00, v36\nv_lshl_add_u32 v36, v5, 5, v36\nv_lshl_add_u32 v36, v1, 2, v36')
    a('v_lshlrev_b32 v37, 14, v5\nv_lshl_add_u32 v37, v6, 10, v37\nv_lshl_add_u32 v37, v2, 8, v37\nv_lshl_add_u32 v37, v1, 5, v37')
    for m, sr in enumerate(('s[28:31]', 's[32:35]')):
        for i in range(8): a(f'buffer_load_dword v{40+8*m+i}, v36, {sr}, s{72+i} offen')
    for i in range(8):
        a(f'buffer_load_dword v{10+i}, v3, s[12:15], {"s48" if i < 4 else "s50"} offen offset:{(i%4)*1024}')
    a('s_waitcnt vmcnt(0)')
    for c, sel in ((0, 's52'), (1, 's53')):
        for p in range(4):
            a(f'v_perm_b32 v{20+4*c+p}, v{11+2*p}, v{10+2*p}, {sel}')
    a('buffer_store_dwordx4 v[20:23], v4, s[16:19], s51 offen')
    a('buffer_store_dwordx4 v[24:27], v4, s[16:19], s51 offen offset:16')
    for m, sr in enumerate(('s[64:67]', 's[68:71]')):
        for c_, sel in ((0, 's52'), (1, 's53')):
            for p in range(4):
                a(f'v_perm_b32 v{56+8*m+4*c_+p}, v{41+8*m+2*p}, v{40+8*m+2*p}, {sel}')
        a(f'buffer_store_dwordx4 v[{56+8*m}:{59+8*m}], v37, {sr}, s80 offen\nbuffer_store_dwordx4 v[{60+8*m}:{63+8*m}], v37, {sr}, s80 offen offset:16')
    a('s_endpgm')

def gemm2d_body(a, NSLOT=46):
    ACC, VOFF, SL0 = 0, 64, 72
    for j in range(4):
        a(f's_mul_i32 s{80+j}, s46, 0x38000\ns_mul_i32 s{84+j}, s47, 0x38000')
        if j: a(f's_add_u32 s{80+j}, s{80+j}, {j*4096}\ns_add_u32 s{84+j}, s{84+j}, {j*4096}')
    a('v_lshrrev_b32 v70, 6, v0\nv_mul_u32_u24 v69, 0x3800, v70\nv_and_b32 v71, 63, v0\nv_lshlrev_b32 v71, 4, v71\nv_add_u32 v64, v71, v69')
    for i in range(1, 4): a(f'v_add_u32 v{VOFF+i}, 0x{i*56*1024:x}, v64')
    a('v_readfirstlane_b32 s54, v70')
    a('v_and_b32 v68, 15, v0\nv_lshl_add_u32 v68, v70, 4, v68\nv_lshlrev_b32 v68, 10, v68\nv_bfe_u32 v69, v0, 4, 2\nv_lshl_add_u32 v70, v69, 3, v68')
    order = [('B', 0), ('A', 0), ('B', 1), ('B', 2), ('B', 3), ('A', 1), ('A', 2), ('A', 3)]
    seq = [(t, o, i) for t in range(14) for (o, i) in order]
    free = list(range(NSLOT)); loc = {}; pos = {}; st = dict(n=0, done=0)
    def issue():
        while st['n'] < len(seq) and free:
            g = seq[st['n']]; s_ = free.pop(0); loc[g] = SL0 + 4*s_; pos[g] = st['n']; st['n'] += 1
            t, o, i = g; r = loc[g]; sr, so = ('s[12:15]', 80) if o == 'A' else ('s[16:19]', 84)
            a(f'buffer_load_dwordx4 v[{r}:{r+3}], v{VOFF+i}, {sr}, s{so+(t>>2)} offen offset:{(t&3)*1024}')
    def need(g):
        if pos[g] + 1 > st['done']:
            a(f's_waitcnt vmcnt({st["n"] - 1 - pos[g]})'); st['done'] = pos[g] + 1
    issue()
    for t in range(14):
        for mt in range(4):
            for nt in range(4):
                gA, gB = (t, 'A', mt), (t, 'B', nt)
                need(gA) if pos[gA] > pos[gB] else need(gB)
                D = ACC + (mt*4+nt)*4
                C = f'v[{D}:{D+3}]' if t else '0'
                a(f'v_mfma_f32_16x16x32_bf16 v[{D}:{D+3}], v[{loc[gB]}:{loc[gB]+3}], v[{loc[gA]}:{loc[gA]+3}], {C}')
                if nt == 3: free.append((loc[gA]-SL0)//4)
                if mt == 3: free.append((loc[gB]-SL0)//4)
                issue()
    stamp(a, 1)
    a('s_nop 7\ns_nop 7\ns_nop 7')
    for mt in range(4):
        a(f's_cmp_eq_u32 s54, {mt}\ns_cbranch_scc1 L_g2d_sk{mt}')
        a(f's_cmp_gt_u32 s54, {mt}\ns_cselect_b32 s55, 1, 0\ns_sub_u32 s55, s54, s55\ns_add_u32 s55, s55, {mt*3}\ns_lshl_b32 s55, s55, 12\nv_add_u32 v69, s55, v71')
        for nt in range(4):
            D = ACC + (mt*4+nt)*4
            a(f'ds_write_b128 v69, v[{D}:{D+3}] offset:{nt*1024}')
        a.label(f'L_g2d_sk{mt}')
    a('s_mul_i32 s55, s54, 0x3000\nv_add_u32 v69, s55, v71')
    a('s_lshl_b32 s52, s46, 16\ns_lshl_b32 s53, s47, 7\ns_add_u32 s52, s52, s53')
    act_consts(a)
    a('s_waitcnt lgkmcnt(0)\ns_barrier')
    R = SL0
    for r in range(3):
        for nt in range(4):
            a(f'ds_read_b128 v[{R+(r*4+nt)*4}:{R+(r*4+nt)*4+3}], v69 offset:{r*4096+nt*1024}')
    for w in range(4):
        a(f's_cmp_lg_u32 s54, {w}\ns_cbranch_scc1 L_g2d_e{w}')
        for r in range(3):
            a(f's_waitcnt lgkmcnt({8-4*r})')
            for nt in range(4):
                D = ACC + (w*4+nt)*4; S = R+(r*4+nt)*4
                a(f'v_pk_add_f32 v[{D}:{D+1}], v[{D}:{D+1}], v[{S}:{S+1}]\nv_pk_add_f32 v[{D+2}:{D+3}], v[{D+2}:{D+3}], v[{S+2}:{S+3}]')
        items = []
        for nt in range(4):
            D = ACC + (w*4+nt)*4
            items += [(D, None, D), (D+2, None, D+1)]
        act_block(a, items, 128, False)
        for nt in range(4):
            D = ACC + (w*4+nt)*4
            a(f'buffer_store_dwordx2 v[{D}:{D+1}], v70, s[24:27], s52 offen offset:{nt*32}' + (' sc0 sc1' if MERGE else ''))
        if MERGE: signal(a, 's54')
        if os.environ.get('DBGT'): a('s_waitcnt vmcnt(0)')
        stamp(a, 2); a('s_waitcnt lgkmcnt(0)'); stamp_flush(a, 3, 's3')
        a('s_endpgm')
        a.label(f'L_g2d_e{w}')

def gen_gemm2d():
    a = Asm(); N = 'gemm2_kernel'
    a.raw(f'.globl {N}\n.p2align 8\n.type {N},@function\n{N}:')
    a('s_mov_b32 s3, s2'); stamp(a, 0)
    a(f's_cmp_ge_u32 s2, {769 if MERGE else 513}\ns_cbranch_scc1 L_g2_done\ns_cmp_ge_u32 s2, 513\ns_cbranch_scc1 L_g2_fin\ns_cmp_ge_u32 s2, 256\ns_cbranch_scc1 L_g2_cols')
    a('s_load_dwordx2 s[10:11], s[0:1], 72')
    a('s_and_b32 s46, s2, 3\ns_lshl_b32 s46, s46, 3\ns_bfe_u32 s47, s2, 0x30003\ns_add_u32 s46, s46, s47')
    a('s_bfe_u32 s47, s2, 0x10002\ns_lshl_b32 s47, s47, 2\ns_lshr_b32 s48, s2, 6\ns_add_u32 s47, s47, s48')
    a('s_waitcnt lgkmcnt(0)')
    srd(a, 12, 10, 11, SZ_H, OFF_H); srd(a, 16, 10, 11, SZ_WDT, OFF_WDT); srd(a, 24, 10, 11, SZ_G, OFF_G)
    gemm2d_body(a)
    a.label('L_g2_done'); a('s_endpgm')
    import k_cols
    a.label('L_g2_cols')
    a('s_setprio 3\ns_sub_u32 s2, s2, 256\nv_readfirstlane_b32 s98, v0\ns_lshr_b32 s98, s98, 6')
    k_cols.cols_body(a)
    if MERGE: signal(a, 's98')
    stamp(a, 2); a('s_waitcnt lgkmcnt(0)'); stamp_flush(a, 3, 's3')
    a('s_endpgm')
    a.label('L_g2_fin')
    a('s_sub_u32 s2, s2, 513')
    import k_final
    k_final.final_body(a, waiter(1024, True), waiter(0, False))
    a('s_endpgm')
    return a.text(), kernel_desc(N, 256), f'; @launch kernel={N} grid=({769 if MERGE else 513},1,1) block=(256,1,1) lds=65536'
```

```python
from common import *
from k_gemm import act_block, act_consts
OFF_WDT = 0x1400000
SZ_WDT = 512*3584

def wdt_body(a, jreg):
    a('s_load_dwordx2 s[10:11], s[0:1], 72\ns_load_dwordx2 s[4:5], s[0:1], 48')
    a(f's_lshr_b32 s46, {jreg}, 3\ns_and_b32 s47, {jreg}, 7')
    a('s_lshl_b32 s48, s46, 16\ns_lshl_b32 s49, s47, 7\ns_add_u32 s48, s48, s49\ns_add_u32 s50, s48, 0x4000')
    a('s_mul_i32 s51, s47, 0x38000\ns_lshl_b32 s49, s46, 11\ns_add_u32 s51, s51, s49')
    a('s_mov_b32 s52, 0x05040100\ns_mov_b32 s53, 0x07060302')
    a('v_and_b32 v1, 7, v0\nv_bfe_u32 v2, v0, 3, 2\nv_bfe_u32 v5, v0, 5, 2\nv_lshrrev_b32 v6, 7, v0')
    a('v_lshlrev_b32 v3, 15, v6\nv_lshl_add_u32 v3, v2, 12, v3\nv_lshl_add_u32 v3, v5, 5, v3\nv_lshl_add_u32 v3, v1, 2, v3')
    a('v_mul_u32_u24 v4, 0xe000, v5\nv_lshl_add_u32 v4, v6, 10, v4\nv_lshl_add_u32 v4, v2, 8, v4\nv_lshl_add_u32 v4, v1, 5, v4')
    a('s_waitcnt lgkmcnt(0)')
    srd(a, 12, 4, 5, 1792*1024); srd(a, 16, 10, 11, SZ_WDT, OFF_WDT)
    for i in range(8):
        a(f'buffer_load_dword v{10+i}, v3, s[12:15], {"s48" if i < 4 else "s50"} offen offset:{(i%4)*1024}')
    a('s_waitcnt vmcnt(0)')
    for c, sel in ((0, 's52'), (1, 's53')):
        for p in range(4):
            a(f'v_perm_b32 v{20+4*c+p}, v{11+2*p}, v{10+2*p}, {sel}')
    a('buffer_store_dwordx4 v[20:23], v4, s[16:19], s51 offen')
    a('buffer_store_dwordx4 v[24:27], v4, s[16:19], s51 offen offset:16')
    a('s_endpgm')

def gemm2d_body(a, NSLOT=46):
    ACC, VOFF, SL0 = 0, 64, 72
    for j in range(4):
        a(f's_mul_i32 s{80+j}, s46, 0x38000\ns_mul_i32 s{84+j}, s47, 0x38000')
        if j: a(f's_add_u32 s{80+j}, s{80+j}, {j*4096}\ns_add_u32 s{84+j}, s{84+j}, {j*4096}')
    a('v_lshrrev_b32 v70, 6, v0\nv_mul_u32_u24 v69, 0x3800, v70\nv_and_b32 v71, 63, v0\nv_lshlrev_b32 v71, 4, v71\nv_add_u32 v64, v71, v69')
    for i in range(1, 4): a(f'v_add_u32 v{VOFF+i}, 0x{i*56*1024:x}, v64')
    a('v_readfirstlane_b32 s54, v70')
    a('v_and_b32 v68, 15, v0\nv_lshl_add_u32 v68, v70, 4, v68\nv_lshlrev_b32 v68, 10, v68\nv_bfe_u32 v69, v0, 4, 2\nv_lshl_add_u32 v70, v69, 3, v68')
    order = [('B', 0), ('A', 0), ('B', 1), ('B', 2), ('B', 3), ('A', 1), ('A', 2), ('A', 3)]
    seq = [(t, o, i) for t in range(14) for (o, i) in order]
    free = list(range(NSLOT)); loc = {}; pos = {}; st = dict(n=0, done=0)
    def issue():
        while st['n'] < len(seq) and free:
            g = seq[st['n']]; s_ = free.pop(0); loc[g] = SL0 + 4*s_; pos[g] = st['n']; st['n'] += 1
            t, o, i = g; r = loc[g]; sr, so = ('s[12:15]', 80) if o == 'A' else ('s[16:19]', 84)
            a(f'buffer_load_dwordx4 v[{r}:{r+3}], v{VOFF+i}, {sr}, s{so+(t>>2)} offen offset:{(t&3)*1024}')
    def need(g):
        if pos[g] + 1 > st['done']:
            a(f's_waitcnt vmcnt({st["n"] - 1 - pos[g]})'); st['done'] = pos[g] + 1
    issue()
    for t in range(14):
        for mt in range(4):
            for nt in range(4):
                gA, gB = (t, 'A', mt), (t, 'B', nt)
                need(gA) if pos[gA] > pos[gB] else need(gB)
                D = ACC + (mt*4+nt)*4
                C = f'v[{D}:{D+3}]' if t else '0'
                a(f'v_mfma_f32_16x16x32_bf16 v[{D}:{D+3}], v[{loc[gB]}:{loc[gB]+3}], v[{loc[gA]}:{loc[gA]+3}], {C}')
                if nt == 3: free.append((loc[gA]-SL0)//4)
                if mt == 3: free.append((loc[gB]-SL0)//4)
                issue()
    stamp(a, 1)
    a('s_nop 7\ns_nop 7\ns_nop 7')
    for mt in range(4):
        a(f's_cmp_eq_u32 s54, {mt}\ns_cbranch_scc1 L_g2d_sk{mt}')
        a(f's_cmp_gt_u32 s54, {mt}\ns_cselect_b32 s55, 1, 0\ns_sub_u32 s55, s54, s55\ns_add_u32 s55, s55, {mt*3}\ns_lshl_b32 s55, s55, 12\nv_add_u32 v69, s55, v71')
        for nt in range(4):
            D = ACC + (mt*4+nt)*4
            a(f'ds_write_b128 v69, v[{D}:{D+3}] offset:{nt*1024}')
        a.label(f'L_g2d_sk{mt}')
    a('s_mul_i32 s55, s54, 0x3000\nv_add_u32 v69, s55, v71')
    a('s_lshl_b32 s52, s46, 16\ns_lshl_b32 s53, s47, 7\ns_add_u32 s52, s52, s53')
    act_consts(a)
    a('s_waitcnt lgkmcnt(0)\ns_barrier')
    R = SL0
    for r in range(3):
        for nt in range(4):
            a(f'ds_read_b128 v[{R+(r*4+nt)*4}:{R+(r*4+nt)*4+3}], v69 offset:{r*4096+nt*1024}')
    for w in range(4):
        a(f's_cmp_lg_u32 s54, {w}\ns_cbranch_scc1 L_g2d_e{w}')
        for r in range(3):
            a(f's_waitcnt lgkmcnt({8-4*r})')
            for nt in range(4):
                D = ACC + (w*4+nt)*4; S = R+(r*4+nt)*4
                a(f'v_pk_add_f32 v[{D}:{D+1}], v[{D}:{D+1}], v[{S}:{S+1}]\nv_pk_add_f32 v[{D+2}:{D+3}], v[{D+2}:{D+3}], v[{S+2}:{S+3}]')
        items = []
        for nt in range(4):
            D = ACC + (w*4+nt)*4
            items += [(D, None, D), (D+2, None, D+1)]
        act_block(a, items, 128, False)
        for nt in range(4):
            D = ACC + (w*4+nt)*4
            a(f'buffer_store_dwordx2 v[{D}:{D+1}], v70, s[24:27], s52 offen offset:{nt*32}')
        if os.environ.get('DBGT'): a('s_waitcnt vmcnt(0)')
        stamp(a, 2); a('s_waitcnt lgkmcnt(0)'); stamp_flush(a, 3, 's3')
        a('s_endpgm')
        a.label(f'L_g2d_e{w}')

def gen_gemm2d():
    a = Asm(); N = 'gemm2_kernel'
    a.raw(f'.globl {N}\n.p2align 8\n.type {N},@function\n{N}:')
    a('s_mov_b32 s3, s2'); stamp(a, 0)
    a('s_cmp_ge_u32 s2, 513\ns_cbranch_scc1 L_g2_done\ns_cmp_ge_u32 s2, 256\ns_cbranch_scc1 L_g2_cols')
    a('s_load_dwordx2 s[10:11], s[0:1], 72')
    a('s_and_b32 s46, s2, 3\ns_lshl_b32 s46, s46, 3\ns_bfe_u32 s47, s2, 0x30003\ns_add_u32 s46, s46, s47')
    a('s_bfe_u32 s47, s2, 0x10002\ns_lshl_b32 s47, s47, 2\ns_lshr_b32 s48, s2, 6\ns_add_u32 s47, s47, s48')
    a('s_waitcnt lgkmcnt(0)')
    srd(a, 12, 10, 11, SZ_H, OFF_H); srd(a, 16, 10, 11, SZ_WDT, OFF_WDT); srd(a, 24, 10, 11, SZ_G, OFF_G)
    gemm2d_body(a)
    a.label('L_g2_done'); a('s_endpgm')
    import k_cols
    a.label('L_g2_cols')
    a('s_setprio 3\ns_sub_u32 s2, s2, 256')
    k_cols.cols_body(a)
    stamp(a, 2); a('s_waitcnt lgkmcnt(0)'); stamp_flush(a, 3, 's3')
    a('s_endpgm')
    return a.text(), kernel_desc(N, 256), f'; @launch kernel={N} grid=(513,1,1) block=(256,1,1) lds=65536'
```

```python
from common import *
def tw_rows(a, lane, TW1, TW2, t):
    a(f'v_lshrrev_b32 v{t}, 3, v{lane}')
    a(f'v_cvt_f32_u32 v{t}, v{t}')
    a(f'v_mul_f32 v{t}, 0x{f2u(-1/64):x}, v{t}')
    for k0 in range(1, 8):
        a(f'v_mul_f32 v{t+1}, 0x{f2u(float(k0)):x}, v{t}')
        sincos(a, TW1+2*k0, t+1)
    a(f'v_and_b32 v{t}, 7, v{lane}')
    a(f'v_lshrrev_b32 v{t+1}, 3, v{lane}')
    a(f'v_mul_u32_u24 v{t+2}, v{t}, v{t+1}')
    a(f'v_cvt_f32_u32 v{t+2}, v{t+2}')
    a(f'v_cvt_f32_u32 v{t}, v{t}')
    a(f'v_mul_f32 v{t+2}, 0x{f2u(-1/512):x}, v{t+2}')
    a(f'v_mul_f32 v{t}, 0x{f2u(-1/64):x}, v{t}')
    for k1 in range(8):
        a(f'v_mov_b32 v{t+3}, 0x{f2u(float(k1)):x}')
        a(f'v_fma_f32 v{t+1}, v{t}, v{t+3}, v{t+2}')
        sincos(a, TW2+2*k1, t+1)

def gen_rows():
    a = Asm()
    N = 'rows_kernel'
    a.raw(f'.globl {N}\n.p2align 8\n.type {N},@function\n{N}:')
    a(f's_cmp_ge_u32 s2, 480\ns_cbranch_scc1 L_rows_done\ns_cmp_ge_u32 s2, 256\ns_cbranch_scc1 L_rows_wdt')
    a('s_load_dwordx2 s[4:5], s[0:1], 0\ns_load_dwordx2 s[6:7], s[0:1], 8\ns_load_dwordx2 s[8:9], s[0:1], 16\ns_load_dwordx2 s[10:11], s[0:1], 72')
    a('v_and_b32 v1, 63, v0\nv_lshrrev_b32 v2, 6, v0')
    a('s_lshl_b32 s40, s2, 3')
    a('v_lshlrev_b32 v3, 1, v2\nv_add_u32 v3, s40, v3')
    a('v_lshlrev_b32 v4, 10, v3\nv_lshl_add_u32 v4, v1, 1, v4')
    a('v_mul_u32_u24 v5, 0x202, v3\nv_lshl_add_u32 v5, v1, 1, v5')
    a(f's_mov_b32 s36, 0x{f2u(math.sqrt(0.5)):x}')
    a('s_waitcnt lgkmcnt(0)')
    srd(a, 12, 4, 5, 2048*512*2)
    srd(a, 16, 6, 7, 2048*257*2)
    srd(a, 20, 8, 9, 2048*257*2)
    srd(a, 24, 10, 11, SZ_SPEC, OFF_SPEC)
    srd(a, 28, 10, 11, SZ_WT, OFF_WT)
    srd(a, 32, 10, 11, SZ_XN, OFF_XN)
    D = 8
    WL = 24
    T = 44; U = 60
    TW1 = 68; TW2 = 84
    tmp = 100
    for r in range(8):
        a(f'buffer_load_ushort v{D+2*r}, v4, s[12:15], 0 offen offset:{r*128}')
        a(f'buffer_load_ushort v{D+2*r+1}, v4, s[12:15], 0 offen offset:{1024+r*128}')
    for r in range(5):
        a(f'buffer_load_ushort v{WL+4*r}, v5, s[16:19], 0 offen offset:{r*128}')
        a(f'buffer_load_ushort v{WL+4*r+1}, v5, s[20:23], 0 offen offset:{r*128}')
        a(f'buffer_load_ushort v{WL+4*r+2}, v5, s[16:19], 0 offen offset:{514+r*128}')
        a(f'buffer_load_ushort v{WL+4*r+3}, v5, s[20:23], 0 offen offset:{514+r*128}')
    tw_rows(a, 1, TW1, TW2, tmp)
    WB = 104
    a('v_mul_u32_u24 v125, 5120, v2')
    a('v_lshl_add_u32 v120, v1, 3, v125')
    a('v_lshrrev_b32 v126, 3, v1\nv_and_b32 v127, 7, v1')
    a('v_mul_u32_u24 v128, 72, v126\nv_add_u32 v128, v128, v127\nv_lshl_add_u32 v121, v128, 3, v125')
    a('v_mul_u32_u24 v128, 9, v126\nv_add_u32 v128, v128, v127\nv_lshl_add_u32 v122, v128, 3, v125')
    a('v_mul_u32_u24 v128, 72, v126\nv_mul_u32_u24 v129, 9, v127\nv_add_u32 v128, v128, v129\nv_lshl_add_u32 v123, v128, 3, v125')
    a('v_sub_u32 v128, 64, v1\nv_lshl_add_u32 v124, v128, 3, v125')
    a('s_waitcnt vmcnt(20)')
    for i in range(16):
        a(f'v_lshlrev_b32 v{D+i}, 16, v{D+i}')
    S0, S1 = tmp, tmp+1
    Q0, Q1 = tmp+2, tmp+3
    for (s, o) in ((S0, 0), (S1, 1)):
        a(f'v_add_f32 v{s}, v{D+o}, v{D+2+o}')
        for r in range(2, 8):
            a(f'v_add_f32 v{s}, v{s}, v{D+2*r+o}')
    allreduce_add(a, S0, tmp+4); allreduce_add(a, S1, tmp+5)
    a(f'v_mul_f32 v{S0}, 0x{f2u(1/512):x}, v{S0}\nv_mul_f32 v{S1}, 0x{f2u(1/512):x}, v{S1}')
    for (q, s, o) in ((Q0, S0, 0), (Q1, S1, 1)):
        for r in range(8):
            a(f'v_sub_f32 v{T+r}, v{D+2*r+o}, v{s}')
        a(f'v_mul_f32 v{q}, v{T}, v{T}')
        for r in range(1, 8):
            a(f'v_fma_f32 v{q}, v{T+r}, v{T+r}, v{q}')
    allreduce_add(a, Q0, tmp+4); allreduce_add(a, Q1, tmp+5)
    a(f'v_mul_f32 v{Q0}, 0x{f2u(1/512):x}, v{Q0}\nv_mul_f32 v{Q1}, 0x{f2u(1/512):x}, v{Q1}')
    round_bf16_pair(a, Q0, Q1, tmp+4)
    round_bf16_pair(a, S0, S1, tmp+4)
    a(f'v_add_f32 v{Q0}, 0x{f2u(1e-5):x}, v{Q0}\nv_add_f32 v{Q1}, 0x{f2u(1e-5):x}, v{Q1}')
    round_bf16_pair(a, Q0, Q1, tmp+4)
    a(f'v_sqrt_f32 v{Q0}, v{Q0}\nv_sqrt_f32 v{Q1}, v{Q1}\ns_nop 0')
    round_bf16_pair(a, Q0, Q1, tmp+4)
    R0, R1 = tmp+6, tmp+7
    a(f'v_rcp_f32 v{R0}, v{Q0}\nv_rcp_f32 v{R1}, v{Q1}')
    for i in range(16):
        s = S0 if i % 2 == 0 else S1
        a(f'v_sub_f32 v{D+i}, v{D+i}, v{s}')
    for r in range(8):
        round_bf16_pair(a, D+2*r, D+2*r+1, tmp+4)
    for i in range(16):
        rr = R0 if i % 2 == 0 else R1; q = Q0 if i % 2 == 0 else Q1
        a(f'v_mul_f32 v{T}, v{D+i}, v{rr}')
        a(f'v_fma_f32 v{T+1}, -v{T}, v{q}, v{D+i}')
        a(f'v_fma_f32 v{D+i}, v{T+1}, v{rr}, v{T}')
    for r in range(8):
        round_bf16_pair(a, D+2*r, D+2*r+1, tmp+4)
    for r in range(8):
        a(f'buffer_store_short_d16_hi v{D+2*r}, v4, s[32:35], 0 offen offset:{r*128}')
        a(f'buffer_store_short_d16_hi v{D+2*r+1}, v4, s[32:35], 0 offen offset:{1024+r*128}')
    X = [D+2*r for r in range(8)]
    r8(a, X, T, U, 36, False)
    for k0 in range(1, 8):
        cmul_tw(a, X[k0], TW1+2*k0, tmp+4, False)
    for k0 in range(8):
        a(f'ds_write_b64 v120, v[{X[k0]}:{X[k0]+1}] offset:{k0*576}')
    a('s_waitcnt lgkmcnt(0)')
    for n1 in range(8):
        a(f'ds_read_b64 v[{X[n1]}:{X[n1]+1}], v121 offset:{n1*64}')
    a('s_waitcnt lgkmcnt(0)')
    r8(a, X, T, U, 36, False)
    for k1 in range(8):
        cmul_tw(a, X[k1], TW2+2*k1, tmp+4, False)
    for k1 in range(8):
        a(f'ds_write_b64 v122, v[{X[k1]}:{X[k1]+1}] offset:{k1*576}')
    a('s_waitcnt lgkmcnt(0)')
    for n0 in range(8):
        a(f'ds_read_b64 v[{X[n0]}:{X[n0]+1}], v123 offset:{n0*8}')
    a('s_waitcnt lgkmcnt(0)')
    r8(a, X, T, U, 36, False)
    a('s_waitcnt vmcnt(16)')
    for r in range(5):
        a(f'v_lshl_or_b32 v{WL+4*r}, v{WL+4*r+1}, 16, v{WL+4*r}')
        a(f'v_lshl_or_b32 v{WL+4*r+1}, v{WL+4*r+3}, 16, v{WL+4*r+2}')
    for r in range(4, 8):
        a(f'ds_write_b64 v120, v[{X[r]}:{X[r]+1}] offset:{(r-4)*512}')
    a(f'ds_write_b64 v120, v[{X[0]}:{X[0]+1}] offset:{2048}')
    a('s_waitcnt lgkmcnt(0)')
    M = T
    for r in range(4):
        a(f'ds_read_b64 v[{M+2*r}:{M+2*r+1}], v124 offset:{(3-r)*512}')
    a('v_lshlrev_b32 v128, 13, v1\nv_lshl_add_u32 v128, v3, 2, v128')
    a('v_lshlrev_b32 v129, 14, v1\nv_lshl_add_u32 v129, v3, 3, v129')
    a('s_waitcnt lgkmcnt(0)')
    O = TW1
    def sep(o, z, m):
        a(f'v_add_f32 v{o}, v{z}, v{m}\nv_sub_f32 v{o+1}, v{z+1}, v{m+1}')
        a(f'v_add_f32 v{o+2}, v{z+1}, v{m+1}\nv_sub_f32 v{o+3}, v{m}, v{z}')
    for r in range(4):
        sep(O+4*r, X[r], M+2*r)
        a(f's_mov_b32 s41, 0x{r*64*16384:x}')
        a(f'buffer_store_dwordx4 v[{O+4*r}:{O+4*r+3}], v129, s[24:27], s41 offen')
        a(f's_mov_b32 s42, 0x{r*64*8192:x}')
        a(f'buffer_store_dwordx2 v[{WL+4*r}:{WL+4*r+1}], v128, s[28:31], s42 offen')
    sep(O+16, X[4], X[4])
    a('v_cmp_eq_u32 vcc, 0, v1\ns_and_saveexec_b64 s[44:45], vcc')
    a(f's_mov_b32 s41, 0x{256*16384:x}')
    a(f'buffer_store_dwordx4 v[{O+16}:{O+19}], v129, s[24:27], s41 offen')
    a(f's_mov_b32 s42, 0x{256*8192:x}')
    a(f'buffer_store_dwordx2 v[{WL+16}:{WL+17}], v128, s[28:31], s42 offen')
    a.label('L_rows_done')
    a('s_endpgm')
    a.label('L_rows_wdt')
    import k_gemm2d
    a('s_sub_u32 s2, s2, 256')
    k_gemm2d.wdt_body(a, 's2')
    return a.text(), kernel_desc(N, 132), f'; @launch kernel={N} grid=(480,1,1) block=(256,1,1) lds={4*5120}'
```

```python
from common import *
def weave(a, mf, rd, oth, span):
    n = len(mf); nr = max(1, int(n*span)); k = 0; k2 = 0
    for i, m in enumerate(mf):
        a(m)
        tgt = min(len(rd), (len(rd)*(i+1) + nr - 1)//nr)
        while k < tgt:
            for l in rd[k]: a(l)
            k += 1
        tgt = (len(oth)*(i+1) + n - 1)//n
        while k2 < tgt:
            for l in oth[k2]: a(l)
            k2 += 1

def silu_pair(a, x0, x1, t):
    a(f'v_mul_f32 v{t}, 0x{f2u(-1.4426950408889634):x}, v{x0}\nv_mul_f32 v{t+1}, 0x{f2u(-1.4426950408889634):x}, v{x1}')
    a(f'v_exp_f32 v{t}, v{t}\nv_exp_f32 v{t+1}, v{t+1}\ns_nop 0')
    a(f'v_add_f32 v{t}, 1.0, v{t}\nv_add_f32 v{t+1}, 1.0, v{t+1}')
    a(f'v_rcp_f32 v{t}, v{t}\nv_rcp_f32 v{t+1}, v{t+1}\ns_nop 0')
    a(f'v_mul_f32 v{x0}, v{x0}, v{t}\nv_mul_f32 v{x1}, v{x1}, v{t+1}')

def act_block(a, items, T, swiglu):
    def each(f):
        for n, it in enumerate(items): f(it, T+2*n)
    if not swiglu:
        pass
    each(lambda it, t: a(f'v_cvt_pk_bf16_f32 v{t}, v{it[0]}, v{it[0]+1}'))
    each(lambda it, t: a(f'v_lshlrev_b32 v{it[0]}, 16, v{t}\nv_and_b32 v{it[0]+1}, 0xffff0000, v{t}'))
    each(lambda it, t: a(f'v_pk_mul_f32 v[{t}:{t+1}], v[{it[0]}:{it[0]+1}], s[60:61]'))
    each(lambda it, t: a(f'v_exp_f32 v{t}, v{t}\nv_exp_f32 v{t+1}, v{t+1}'))
    each(lambda it, t: a(f'v_pk_add_f32 v[{t}:{t+1}], v[{t}:{t+1}], s[62:63]'))
    each(lambda it, t: a(f'v_rcp_f32 v{t}, v{t}\nv_rcp_f32 v{t+1}, v{t+1}'))
    each(lambda it, t: a(f'v_pk_mul_f32 v[{it[0]}:{it[0]+1}], v[{it[0]}:{it[0]+1}], v[{t}:{t+1}]'))
    if not swiglu:
        each(lambda it, t: a(f'v_cvt_pk_bf16_f32 v{it[2]}, v{it[0]}, v{it[0]+1}'))
        return
    each(lambda it, t: a(f'v_cvt_pk_bf16_f32 v{t}, v{it[0]}, v{it[0]+1}\nv_cvt_pk_bf16_f32 v{t+1}, v{it[1]}, v{it[1]+1}'))
    each(lambda it, t: a(f'v_lshlrev_b32 v{it[0]}, 16, v{t}\nv_and_b32 v{it[0]+1}, 0xffff0000, v{t}'))
    each(lambda it, t: a(f'v_lshlrev_b32 v{it[1]}, 16, v{t+1}\nv_and_b32 v{it[1]+1}, 0xffff0000, v{t+1}'))
    each(lambda it, t: a(f'v_pk_mul_f32 v[{it[0]}:{it[0]+1}], v[{it[0]}:{it[0]+1}], v[{it[1]}:{it[1]+1}]'))
    each(lambda it, t: a(f'v_cvt_pk_bf16_f32 v{it[2]}, v{it[0]}, v{it[0]+1}'))

def act_consts(a):
    a(f's_mov_b32 s60, 0x{f2u(-1.4426950408889634):x}\ns_mov_b32 s61, 0x{f2u(-1.4426950408889634):x}\ns_mov_b32 s62, 1.0\ns_mov_b32 s63, 1.0')

def gemm_body(a, c):
    BM, NP, K, NS = c['BM'], c['NP'], c['K'], c['NS']
    pA, pB = c['pitchA'], c['pitchB']
    MT = c['MT']; frags = c['frags']; units = c['units']
    NSTG = K//64; SA = BM*128; SB = 8192; SS = SA + NP*SB
    ACC = c['ACC']; AF = c['AF']; BF = c['BF']
    a('v_and_b32 v1, 63, v0\nv_lshrrev_b32 v2, 6, v0')
    a('s_nop 0\nv_readfirstlane_b32 s50, v2')
    a('s_nop 3\ns_lshl_b32 s51, s50, 10')
    t = c['tmp']
    a(f'v_lshrrev_b32 v{t}, 3, v1\nv_and_b32 v{t+1}, 7, v1\nv_xor_b32 v{t+2}, v{t+1}, v{t}')
    a(f'v_lshl_add_u32 v{t+3}, v2, 3, v{t}')
    a(f'v_mul_u32_u24 v3, 0x{pA:x}, v{t+3}\nv_lshl_add_u32 v3, v{t+2}, 4, v3')
    a(f'v_and_b32 v{t+2}, 2, v{t}\nv_and_b32 v{t+4}, 1, v2\nv_lshl_or_b32 v{t+2}, v{t+4}, 2, v{t+2}\nv_xor_b32 v{t+2}, v{t+1}, v{t+2}')
    a(f'v_mul_u32_u24 v4, 0x{pB:x}, v{t+3}\nv_lshl_add_u32 v4, v{t+2}, 4, v4')
    BFR = c.get('bfrag')
    if BFR:
        a(f'v_lshrrev_b32 v{t+2}, 1, v2\nv_lshlrev_b32 v4, 14, v{t+2}\nv_and_b32 v{t+2}, 1, v2\nv_lshl_add_u32 v4, v{t+2}, 10, v4\nv_lshl_add_u32 v4, v1, 4, v4')
    def dma(s):
        L = []
        b = s % NS
        for j in range(BM//32):
            L.append([f's_add_u32 m0, s51, 0x{b*SS + j*4096:x}', f's_add_u32 s52, {c["soffA"]}, 0x{s*128 + 32*j*pA:x}',
                      f'buffer_load_dwordx4 v3, s[12:15], s52 offen lds'])
        for p in range(NP):
            for j in range(2):
                sr = c['bsrd'][p]
                L.append([f's_add_u32 m0, s51, 0x{b*SS + SA + p*SB + j*4096:x}',
                          (f's_add_u32 s52, {c["soffB"]}, 0x{(s*64 + 32*j)*pB + c["bcol"][p]:x}' if not BFR else
                           f's_add_u32 s52, {c["soffB"]}, 0x{(p&1)*65536 + s*2048 + j*32768:x}'),
                          f'buffer_load_dwordx4 v4, s[{sr}:{sr+3}], s52 offen lds'])
        return L
    ND = BM//32 + 2*NP
    import os
    VW = 0 if os.environ.get('VW0') else ND*(NS-2)
    for s_ in range(NS-1):
        for g in dma(s_):
            for l in g: a(l)
    a(f'v_lshrrev_b32 v{t+5}, 1, v2\nv_and_b32 v{t+6}, 1, v2')
    a(f'v_and_b32 v{t}, 15, v1\nv_mul_u32_u24 v{t+1}, {MT*16}, v{t+5}\nv_add_u32 v{t}, v{t}, v{t+1}\nv_lshlrev_b32 v{t}, 7, v{t}')
    a(f'v_lshrrev_b32 v{t+1}, 4, v1\nv_and_b32 v{t+2}, 7, v1\nv_xor_b32 v{t+1}, v{t+1}, v{t+2}\nv_lshl_add_u32 v5, v{t+1}, 4, v{t}')
    a('v_xor_b32 v6, 64, v5')
    nts = c['nts']
    a(f'v_lshrrev_b32 v{t}, 4, v1\nv_bfe_u32 v{t+1}, v1, 2, 2\nv_and_b32 v{t+2}, 3, v1')
    a(f'v_lshl_add_u32 v{t+3}, v{t}, 3, v{t+1}\nv_lshlrev_b32 v{t+3}, 7, v{t+3}')
    a(f'v_and_b32 v{t+4}, 2, v{t+1}\nv_and_b32 v{t}, 1, v{t}\nv_lshl_or_b32 v{t+4}, v{t}, 2, v{t+4}')
    a(f'v_and_b32 v{t}, 1, v{t+2}\nv_lshl_add_u32 v{t+3}, v{t}, 3, v{t+3}')
    a(f'v_lshrrev_b32 v{t+2}, 1, v{t+2}')
    a(f'v_add_u32 v{t+3}, 0x{SA:x}, v{t+3}')
    if c['wn_panel']:
        a(f'v_lshl_add_u32 v{t+3}, v{t+6}, 13, v{t+3}')
    for ts in range(nts):
        if c['wn_panel']: a(f'v_mov_b32 v{t+7}, {2*ts}')
        else: a(f'v_lshlrev_b32 v{t+7}, 2, v{t+6}\nv_add_u32 v{t+7}, {2*ts}, v{t+7}')
        a(f'v_add_u32 v{t+7}, v{t+7}, v{t+2}\nv_xor_b32 v{t+7}, v{t+7}, v{t+4}\nv_lshl_add_u32 v{8+ts}, v{t+7}, 4, v{t+3}')
        if BFR: a(f'v_lshlrev_b32 v{8+ts}, 4, v1\nv_lshl_add_u32 v{8+ts}, v{t+6}, 13, v{8+ts}\nv_add_u32 v{8+ts}, 0x{SA:x}, v{8+ts}')
    NAD = 2 + nts
    base_regs = [5, 6] + [8+i for i in range(nts)]
    R0 = c['ADDR']
    for b in range(NS):
        for i, r in enumerate(base_regs):
            a(f'v_add_u32 v{R0+b*NAD+i}, 0x{b*SS:x}, v{r}')
    seq = [(s, ui) for s in range(NSTG) for ui in range(len(units))]
    NA = c['NA']; NB = max(sum(len(f) for _, f in un) for un in units)
    firstu = {}
    for ui, un in enumerate(units):
        for (u, _) in un: firstu.setdefault(u, ui)
    def areg(s, u, mt): return AF + ((2*s+u) % NA)*MT*4 + mt*4
    def reads(i):
        s, ui = seq[i]; b = s % NS; L = []; slot = 0
        for (u, fl) in units[ui]:
            if firstu[u] == ui:
                for mt in range(MT):
                    r = areg(s, u, mt)
                    L.append([f'ds_read_b128 v[{r}:{r+3}], v{R0+b*NAD+u} offset:{mt*2048}'])
            for fid in fl:
                P, ts = frags[fid]
                r = BF + (i % 2)*NB*4 + slot*4; slot += 1
                if BFR:
                    L.append([f'ds_read_b128 v[{r}:{r+3}], v{R0+b*NAD+2+ts} offset:{P*c["pstride"] + (ts*2+u)*1024}'])
                    continue
                for h in range(2):
                    L.append([f'ds_read_b64_tr_b16 v[{r+2*h}:{r+2*h+1}], v{R0+b*NAD+2+ts} offset:{P*c["pstride"] + (32*u+4*h)*128}'])
        return L
    def mfmas(i):
        s, ui = seq[i]; L = []; slot = 0
        for (u, fl) in units[ui]:
            for fid in fl:
                rb = BF + (i % 2)*NB*4 + slot*4; slot += 1
                for mt in range(MT):
                    ra = areg(s, u, mt); d = ACC + (fid*MT + mt)*4
                    cc = '0' if (s == 0 and u == 0) else f'v[{d}:{d+3}]'
                    L.append(f'v_mfma_f32_16x16x32_bf16 v[{d}:{d+3}], v[{rb}:{rb+3}], v[{ra}:{ra+3}], {cc}')
        return L
    stamp(a, 1)
    a(f's_waitcnt vmcnt({VW})\ns_barrier')
    stamp(a, 2)
    if NS-1 < NSTG:
        for g in dma(NS-1):
            for l in g: a(l)
    for g in reads(0): a(g[0])
    pend = []; per = (ND + len(units) - 1)//len(units) if NS > 2 else ND
    for i in range(len(seq)):
        s, ui = seq[i]
        a('s_waitcnt lgkmcnt(0)')
        if ui == len(units)-1 and s+1 < NSTG:
            assert not pend
            a(f's_waitcnt vmcnt({min(VW, ND*(min(NSTG-1, s+NS-1) - (s+1)))})\ns_barrier')
            if s+NS < NSTG: pend = dma(s+NS)
        oth = pend[:per]; pend = pend[per:]
        rd = reads(i+1) if i+1 < len(seq) else []
        weave(a, mfmas(i), rd, oth, c['span'])
    a('s_nop 7\ns_nop 7')
    stamp(a, 3)

def gen_gemm1():
    a = Asm(); N = 'gemm1_kernel'
    a.raw(f'.globl {N}\n.p2align 8\n.type {N},@function\n{N}:')
    import os
    WS = bool(os.environ.get('WSPLIT'))
    if WS: a('s_cmp_ge_u32 s2, 256\ns_cbranch_scc1 L_g1_done\ns_cmp_ge_u32 s2, 224\ns_cbranch_scc1 L_g1_wdt')
    else: a('s_cmp_ge_u32 s2, 224\ns_cbranch_scc1 L_g1_done')
    stamp(a, 0)
    gemm1_body(a, 's2')
    a('s_waitcnt vmcnt(0) lgkmcnt(0)')
    stamp(a, 4)
    a('s_waitcnt lgkmcnt(0)')
    stamp_flush(a, 5)
    a.label('L_g1_done'); a('s_endpgm')
    if WS:
        import k_gemm2d
        a.label('L_g1_wdt'); a('s_sub_u32 s2, s2, 224')
        k_gemm2d.wdtD_multi(a, 's2')
    return a.text(), kernel_desc(N, 256), f'; @launch kernel={N} grid=({256 if WS else 224},1,1) block=(256,1,1) lds={3*49152}'

def gemm1_body(a, wg):
    a('s_load_dwordx2 s[10:11], s[0:1], 72\ns_load_dwordx2 s[4:5], s[0:1], 32\ns_load_dwordx2 s[6:7], s[0:1], 40')
    a(f's_and_b32 s46, {wg}, 3\ns_lshl_b32 s46, s46, 2\ns_bfe_u32 s47, {wg}, 0x20003\ns_add_u32 s46, s46, s47')
    a(f's_bfe_u32 s47, {wg}, 0x10002\ns_mul_i32 s47, s47, 7\ns_lshr_b32 s48, {wg}, 5\ns_add_u32 s47, s47, s48')
    a('s_lshl_b32 s48, s46, 17\ns_lshl_b32 s49, s47, 17')
    a('s_waitcnt lgkmcnt(0)')
    srd(a, 12, 10, 11, SZ_XN, OFF_XN); srd(a, 16, 10, 11, 512*3584, 0x1A00000); srd(a, 20, 10, 11, 512*3584, 0x1C00000); srd(a, 24, 10, 11, SZ_H, OFF_H)
    c = dict(bfrag=True, BM=128, NP=4, K=512, NS=3, pitchA=1024, pitchB=3584, MT=4, frags=[(P, t) for P in range(2) for t in range(4)],
             units=[[(0, [0, 1, 2, 3])], [(0, [4, 5, 6, 7])], [(1, [0, 1, 2, 3])], [(1, [4, 5, 6, 7])]], NA=2, span=0.5, ACC=128, AF=64, BF=96, tmp=40, nts=4, wn_panel=True, ADDR=16,
             soffA='s48', soffB='s49', bsrd=[16, 16, 20, 20], bcol=[0, 128, 0, 128], pstride=16384)
    gemm_body(a, c)
    a('v_lshrrev_b32 v41, 1, v2\nv_mul_u32_u24 v40, 0x38000, v41\nv_and_b32 v41, 1, v2\nv_lshl_add_u32 v40, v41, 11, v40\nv_lshl_add_u32 v40, v1, 4, v40')
    a('s_mul_i32 s52, s46, 0x70000\ns_lshl_b32 s53, s47, 12\ns_add_u32 s52, s52, s53')
    act_consts(a)
    for mt in range(4):
        for tp in range(2):
            items = []
            G0 = 128 + (2*tp*4+mt)*4
            for j, t in enumerate((2*tp, 2*tp+1)):
                G = 128 + (t*4+mt)*4; Uu = 128 + ((4+t)*4+mt)*4
                items += [(G, Uu, G0+2*j), (G+2, Uu+2, G0+2*j+1)]
            act_block(a, items, 44, True)
            a(f's_add_u32 s53, s52, 0x{(mt*56 + tp)*1024:x}')
            a(f'buffer_store_dwordx4 v[{G0}:{G0+3}], v40, s[24:27], s53 offen')
```

```python
from common import *
from k_gemm import act_block, act_consts
OFF_WDT = 0x1400000
SZ_WDT = 512*3584
OFF_CNT = 0x1800000
MERGE = bool(os.environ.get('MERGE'))
def cnt_base(a):
    a(f's_load_dwordx2 s[56:57], s[0:1], 72\ns_waitcnt lgkmcnt(0)\ns_add_u32 s56, s56, 0x{OFF_CNT:x}\ns_addc_u32 s57, s57, 0')
_sn = [0]
def signal(a, wsg):
    n = _sn[0]; _sn[0] += 1
    a(f's_waitcnt vmcnt(0)\ns_barrier\ns_cmp_lg_u32 {wsg}, 0\ns_cbranch_scc1 L_sg{n}')
    cnt_base(a)
    a('s_lshl_b32 s58, s3, 2\ns_mov_b64 exec, 1\nv_mov_b32 v1, 1\nv_mov_b32 v2, s58\nglobal_store_dword v2, v1, s[56:57] sc0 sc1')
    a.label(f'L_sg{n}')
_wn = [0]
def waiter(off, extra):
    def f(a):
        n = _wn[0]; _wn[0] += 1
        cnt_base(a)
        a(f's_mov_b32 s58, 0x40000\nv_lshlrev_b32 v131, 4, v1\nv_readfirstlane_b32 s59, v2\ns_cmp_lg_u32 s59, 0\ns_cbranch_scc1 L_wd{n}')
        a.label(f'L_w{n}')
        a(f'global_load_dwordx4 v[126:129], v131, s[56:57] offset:{off} sc0 sc1')
        if extra: a(f'global_load_dword v130, v131, s[56:57] offset:{off+1024} sc0 sc1')
        a('s_waitcnt vmcnt(0)\nv_min_u32 v126, v126, v127\nv_min_u32 v128, v128, v129\nv_min_u32 v126, v126, v128')
        if extra: a('v_readfirstlane_b32 s59, v130\nv_min_u32 v126, s59, v126')
        a(f'v_cmp_eq_u32 vcc, 0, v126\ns_cmp_eq_u64 vcc, 0\ns_cbranch_scc1 L_wd{n}\ns_sub_u32 s58, s58, 1\ns_cmp_eq_u32 s58, 0\ns_cbranch_scc1 L_wd{n}\ns_sleep 8\ns_branch L_w{n}')
        a.label(f'L_wd{n}')
        a('s_barrier')
    return f

def wdt_body(a, jreg, doD=True):
    a('s_load_dwordx2 s[10:11], s[0:1], 72\ns_load_dwordx2 s[4:5], s[0:1], 48')
    a(f's_lshr_b32 s46, {jreg}, 3\ns_and_b32 s47, {jreg}, 7')
    a('s_lshl_b32 s48, s46, 16\ns_lshl_b32 s49, s47, 7\ns_add_u32 s48, s48, s49\ns_add_u32 s50, s48, 0x4000')
    a('s_mul_i32 s51, s47, 0x38000\ns_lshl_b32 s49, s46, 11\ns_add_u32 s51, s51, s49')
    a('s_mov_b32 s52, 0x05040100\ns_mov_b32 s53, 0x07060302')
    a('v_and_b32 v1, 7, v0\nv_bfe_u32 v2, v0, 3, 2\nv_bfe_u32 v5, v0, 5, 2\nv_lshrrev_b32 v6, 7, v0')
    a('v_lshlrev_b32 v3, 15, v6\nv_lshl_add_u32 v3, v2, 12, v3\nv_lshl_add_u32 v3, v5, 5, v3\nv_lshl_add_u32 v3, v1, 2, v3')
    a('v_mul_u32_u24 v4, 0xe000, v5\nv_lshl_add_u32 v4, v6, 10, v4\nv_lshl_add_u32 v4, v2, 8, v4\nv_lshl_add_u32 v4, v1, 5, v4')
    a('s_load_dwordx4 s[24:27], s[0:1], 32')
    a('s_waitcnt lgkmcnt(0)')
    srd(a, 12, 4, 5, 1792*1024); srd(a, 16, 10, 11, SZ_WDT, OFF_WDT)
    srd(a, 28, 24, 25, 512*3584); srd(a, 32, 26, 27, 512*3584)
    srd(a, 64, 10, 11, 512*3584, 0x1A00000); srd(a, 68, 10, 11, 512*3584, 0x1C00000)
    a('s_mul_i32 s72, s47, 0x38000\ns_lshl_b32 s73, s46, 7\ns_add_u32 s72, s72, s73')
    for i in range(1, 8): a(f's_add_u32 s{72+i}, s72, {i*3584}')
    a('s_lshl_b32 s80, s46, 16\ns_lshl_b32 s81, s47, 11\ns_add_u32 s80, s80, s81')
    a('v_lshlrev_b32 v36, 5, v6\nv_lshl_add_u32 v36, v2, 3, v36\nv_mul_u32_u24 v36, 0xe00, v36\nv_lshl_add_u32 v36, v5, 5, v36\nv_lshl_add_u32 v36, v1, 2, v36')
    a('v_lshlrev_b32 v37, 14, v5\nv_lshl_add_u32 v37, v6, 10, v37\nv_lshl_add_u32 v37, v2, 8, v37\nv_lshl_add_u32 v37, v1, 5, v37')
    for m, sr in enumerate(('s[28:31]', 's[32:35]')):
        for i in range(8): a(f'buffer_load_dword v{40+8*m+i}, v36, {sr}, s{72+i} offen')
    for i in range(8 if doD else 0):
        a(f'buffer_load_dword v{10+i}, v3, s[12:15], {"s48" if i < 4 else "s50"} offen offset:{(i%4)*1024}')
    a('s_waitcnt vmcnt(0)')
    for c, sel in ((0, 's52'), (1, 's53')) if doD else ():
        for p in range(4):
            a(f'v_perm_b32 v{20+4*c+p}, v{11+2*p}, v{10+2*p}, {sel}')
    if doD:
        a('buffer_store_dwordx4 v[20:23], v4, s[16:19], s51 offen')
        a('buffer_store_dwordx4 v[24:27], v4, s[16:19], s51 offen offset:16')
    for m, sr in enumerate(('s[64:67]', 's[68:71]')):
        for c_, sel in ((0, 's52'), (1, 's53')):
            for p in range(4):
                a(f'v_perm_b32 v{56+8*m+4*c_+p}, v{41+8*m+2*p}, v{40+8*m+2*p}, {sel}')
        a(f'buffer_store_dwordx4 v[{56+8*m}:{59+8*m}], v37, {sr}, s80 offen\nbuffer_store_dwordx4 v[{60+8*m}:{63+8*m}], v37, {sr}, s80 offen offset:16')
    a('s_endpgm')

def wdtD_multi(a, wreg, NT=7):
    a('s_load_dwordx2 s[10:11], s[0:1], 72\ns_load_dwordx2 s[4:5], s[0:1], 48')
    a(f's_mul_i32 s44, {wreg}, {NT}')
    a('s_mov_b32 s52, 0x05040100\ns_mov_b32 s53, 0x07060302')
    a('v_and_b32 v1, 7, v0\nv_bfe_u32 v2, v0, 3, 2\nv_bfe_u32 v5, v0, 5, 2\nv_lshrrev_b32 v6, 7, v0')
    a('v_lshlrev_b32 v3, 15, v6\nv_lshl_add_u32 v3, v2, 12, v3\nv_lshl_add_u32 v3, v5, 5, v3\nv_lshl_add_u32 v3, v1, 2, v3')
    a('v_mul_u32_u24 v4, 0xe000, v5\nv_lshl_add_u32 v4, v6, 10, v4\nv_lshl_add_u32 v4, v2, 8, v4\nv_lshl_add_u32 v4, v1, 5, v4')
    for i in range(NT):
        L, L2, S = 56+3*i, 57+3*i, 58+3*i
        a(f's_add_u32 s45, s44, {i}\ns_lshr_b32 s46, s45, 3\ns_and_b32 s47, s45, 7')
        a(f's_lshl_b32 s{L}, s46, 16\ns_lshl_b32 s49, s47, 7\ns_add_u32 s{L}, s{L}, s49\ns_add_u32 s{L2}, s{L}, 0x4000')
        a(f's_mul_i32 s{S}, s47, 0x38000\ns_lshl_b32 s49, s46, 11\ns_add_u32 s{S}, s{S}, s49')
    a('s_waitcnt lgkmcnt(0)')
    srd(a, 12, 4, 5, 1792*1024); srd(a, 16, 10, 11, SZ_WDT, OFF_WDT)
    for i in range(NT):
        for r in range(8):
            a(f'buffer_load_dword v{10+8*i+r}, v3, s[12:15], s{(56 if r < 4 else 57)+3*i} offen offset:{(r%4)*1024}')
    a('s_waitcnt vmcnt(0)')
    for i in range(NT):
        b, d = 10+8*i, 70+8*i
        for c, sel in ((0, 's52'), (1, 's53')):
            for p in range(4):
                a(f'v_perm_b32 v{d+4*c+p}, v{b+1+2*p}, v{b+2*p}, {sel}')
        a(f'buffer_store_dwordx4 v[{d}:{d+3}], v4, s[16:19], s{58+3*i} offen')
        a(f'buffer_store_dwordx4 v[{d+4}:{d+7}], v4, s[16:19], s{58+3*i} offen offset:16')
    a('s_endpgm')

def gemm2d_body(a, NSLOT=46):
    ACC, VOFF, SL0 = 0, 64, 72
    for j in range(4):
        a(f's_mul_i32 s{80+j}, s46, 0x38000\ns_mul_i32 s{84+j}, s47, 0x38000')
        if j: a(f's_add_u32 s{80+j}, s{80+j}, {j*4096}\ns_add_u32 s{84+j}, s{84+j}, {j*4096}')
    a('v_lshrrev_b32 v70, 6, v0\nv_mul_u32_u24 v69, 0x3800, v70\nv_and_b32 v71, 63, v0\nv_lshlrev_b32 v71, 4, v71\nv_add_u32 v64, v71, v69')
    for i in range(1, 4): a(f'v_add_u32 v{VOFF+i}, 0x{i*56*1024:x}, v64')
    a('v_readfirstlane_b32 s54, v70')
    a('v_and_b32 v68, 15, v0\nv_lshl_add_u32 v68, v70, 4, v68\nv_lshlrev_b32 v68, 10, v68\nv_bfe_u32 v69, v0, 4, 2\nv_lshl_add_u32 v70, v69, 3, v68')
    order = [('B', 0), ('A', 0), ('B', 1), ('B', 2), ('B', 3), ('A', 1), ('A', 2), ('A', 3)]
    seq = [(t, o, i) for t in range(14) for (o, i) in order]
    free = list(range(NSLOT)); loc = {}; pos = {}; st = dict(n=0, done=0)
    def issue():
        while st['n'] < len(seq) and free:
            g = seq[st['n']]; s_ = free.pop(0); loc[g] = SL0 + 4*s_; pos[g] = st['n']; st['n'] += 1
            t, o, i = g; r = loc[g]; sr, so = ('s[12:15]', 80) if o == 'A' else ('s[16:19]', 84)
            a(f'buffer_load_dwordx4 v[{r}:{r+3}], v{VOFF+i}, {sr}, s{so+(t>>2)} offen offset:{(t&3)*1024}')
    def need(g):
        if pos[g] + 1 > st['done']:
            a(f's_waitcnt vmcnt({st["n"] - 1 - pos[g]})'); st['done'] = pos[g] + 1
    issue()
    for t in range(14):
        for mt in range(4):
            for nt in range(4):
                gA, gB = (t, 'A', mt), (t, 'B', nt)
                need(gA) if pos[gA] > pos[gB] else need(gB)
                D = ACC + (mt*4+nt)*4
                C = f'v[{D}:{D+3}]' if t else '0'
                a(f'v_mfma_f32_16x16x32_bf16 v[{D}:{D+3}], v[{loc[gB]}:{loc[gB]+3}], v[{loc[gA]}:{loc[gA]+3}], {C}')
                if nt == 3: free.append((loc[gA]-SL0)//4)
                if mt == 3: free.append((loc[gB]-SL0)//4)
                issue()
    stamp(a, 1)
    a('s_nop 7\ns_nop 7\ns_nop 7')
    for mt in range(4):
        a(f's_cmp_eq_u32 s54, {mt}\ns_cbranch_scc1 L_g2d_sk{mt}')
        a(f's_cmp_gt_u32 s54, {mt}\ns_cselect_b32 s55, 1, 0\ns_sub_u32 s55, s54, s55\ns_add_u32 s55, s55, {mt*3}\ns_lshl_b32 s55, s55, 12\nv_add_u32 v69, s55, v71')
        for nt in range(4):
            D = ACC + (mt*4+nt)*4
            a(f'ds_write_b128 v69, v[{D}:{D+3}] offset:{nt*1024}')
        a.label(f'L_g2d_sk{mt}')
    a('s_mul_i32 s55, s54, 0x3000\nv_add_u32 v69, s55, v71')
    a('s_lshl_b32 s52, s46, 16\ns_lshl_b32 s53, s47, 7\ns_add_u32 s52, s52, s53')
    act_consts(a)
    a('s_waitcnt lgkmcnt(0)\ns_barrier')
    R = SL0
    for r in range(3):
        for nt in range(4):
            a(f'ds_read_b128 v[{R+(r*4+nt)*4}:{R+(r*4+nt)*4+3}], v69 offset:{r*4096+nt*1024}')
    for w in range(4):
        a(f's_cmp_lg_u32 s54, {w}\ns_cbranch_scc1 L_g2d_e{w}')
        for r in range(3):
            a(f's_waitcnt lgkmcnt({8-4*r})')
            for nt in range(4):
                D = ACC + (w*4+nt)*4; S = R+(r*4+nt)*4
                a(f'v_pk_add_f32 v[{D}:{D+1}], v[{D}:{D+1}], v[{S}:{S+1}]\nv_pk_add_f32 v[{D+2}:{D+3}], v[{D+2}:{D+3}], v[{S+2}:{S+3}]')
        items = []
        for nt in range(4):
            D = ACC + (w*4+nt)*4
            items += [(D, None, D), (D+2, None, D+1)]
        act_block(a, items, 128, False)
        for nt in range(4):
            D = ACC + (w*4+nt)*4
            a(f'buffer_store_dwordx2 v[{D}:{D+1}], v70, s[24:27], s52 offen offset:{nt*32}' + (' sc0 sc1' if MERGE else ''))
        if MERGE: signal(a, 's54')
        if os.environ.get('DBGT'): a('s_waitcnt vmcnt(0)')
        stamp(a, 2); a('s_waitcnt lgkmcnt(0)'); stamp_flush(a, 3, 's3')
        a('s_endpgm')
        a.label(f'L_g2d_e{w}')

def gen_gemm2d():
    a = Asm(); N = 'gemm2_kernel'
    a.raw(f'.globl {N}\n.p2align 8\n.type {N},@function\n{N}:')
    a('s_mov_b32 s3, s2'); stamp(a, 0)
    a(f's_cmp_ge_u32 s2, {769 if MERGE else 513}\ns_cbranch_scc1 L_g2_done\ns_cmp_ge_u32 s2, 513\ns_cbranch_scc1 L_g2_fin\ns_cmp_ge_u32 s2, 256\ns_cbranch_scc1 L_g2_cols')
    a('s_load_dwordx2 s[10:11], s[0:1], 72')
    a('s_and_b32 s46, s2, 3\ns_lshl_b32 s46, s46, 3\ns_bfe_u32 s47, s2, 0x30003\ns_add_u32 s46, s46, s47')
    a('s_bfe_u32 s47, s2, 0x10002\ns_lshl_b32 s47, s47, 2\ns_lshr_b32 s48, s2, 6\ns_add_u32 s47, s47, s48')
    a('s_waitcnt lgkmcnt(0)')
    srd(a, 12, 10, 11, SZ_H, OFF_H); srd(a, 16, 10, 11, SZ_WDT, OFF_WDT); srd(a, 24, 10, 11, SZ_G, OFF_G)
    gemm2d_body(a)
    a.label('L_g2_done'); a('s_endpgm')
    import k_cols
    a.label('L_g2_cols')
    a('s_setprio 3\ns_sub_u32 s2, s2, 256\nv_readfirstlane_b32 s98, v0\ns_lshr_b32 s98, s98, 6')
    k_cols.cols_body(a)
    if MERGE: signal(a, 's98')
    stamp(a, 2); a('s_waitcnt lgkmcnt(0)'); stamp_flush(a, 3, 's3')
    a('s_endpgm')
    a.label('L_g2_fin')
    a('s_sub_u32 s2, s2, 513')
    import k_final
    k_final.final_body(a, waiter(1024, True), waiter(0, False))
    a('s_endpgm')
    return a.text(), kernel_desc(N, 256), f'; @launch kernel={N} grid=({769 if MERGE else 513},1,1) block=(256,1,1) lds=65536'
```

```python
from common import *
def tw_rows(a, lane, TW1, TW2, t):
    a(f'v_lshrrev_b32 v{t}, 3, v{lane}')
    a(f'v_cvt_f32_u32 v{t}, v{t}')
    a(f'v_mul_f32 v{t}, 0x{f2u(-1/64):x}, v{t}')
    for k0 in range(1, 8):
        a(f'v_mul_f32 v{t+1}, 0x{f2u(float(k0)):x}, v{t}')
        sincos(a, TW1+2*k0, t+1)
    a(f'v_and_b32 v{t}, 7, v{lane}')
    a(f'v_lshrrev_b32 v{t+1}, 3, v{lane}')
    a(f'v_mul_u32_u24 v{t+2}, v{t}, v{t+1}')
    a(f'v_cvt_f32_u32 v{t+2}, v{t+2}')
    a(f'v_cvt_f32_u32 v{t}, v{t}')
    a(f'v_mul_f32 v{t+2}, 0x{f2u(-1/512):x}, v{t+2}')
    a(f'v_mul_f32 v{t}, 0x{f2u(-1/64):x}, v{t}')
    for k1 in range(8):
        a(f'v_mov_b32 v{t+3}, 0x{f2u(float(k1)):x}')
        a(f'v_fma_f32 v{t+1}, v{t}, v{t+3}, v{t+2}')
        sincos(a, TW2+2*k1, t+1)

def gen_rows():
    a = Asm()
    N = 'rows_kernel'
    a.raw(f'.globl {N}\n.p2align 8\n.type {N},@function\n{N}:')
    a(f's_cmp_ge_u32 s2, 480\ns_cbranch_scc1 L_rows_done\ns_cmp_ge_u32 s2, 256\ns_cbranch_scc1 L_rows_wdt')
    a('s_load_dwordx2 s[4:5], s[0:1], 0\ns_load_dwordx2 s[6:7], s[0:1], 8\ns_load_dwordx2 s[8:9], s[0:1], 16\ns_load_dwordx2 s[10:11], s[0:1], 72')
    stamp(a, 0)
    a('v_and_b32 v1, 63, v0\nv_lshrrev_b32 v2, 6, v0')
    a('s_lshl_b32 s40, s2, 3')
    a('v_lshlrev_b32 v3, 1, v2\nv_add_u32 v3, s40, v3')
    a('v_lshlrev_b32 v4, 10, v3\nv_lshl_add_u32 v4, v1, 1, v4')
    a('v_mul_u32_u24 v5, 0x202, v3\nv_lshl_add_u32 v5, v1, 1, v5')
    a(f's_mov_b32 s36, 0x{f2u(math.sqrt(0.5)):x}')
    a('s_waitcnt lgkmcnt(0)')
    srd(a, 12, 4, 5, 2048*512*2)
    srd(a, 16, 6, 7, 2048*257*2)
    srd(a, 20, 8, 9, 2048*257*2)
    srd(a, 24, 10, 11, SZ_SPEC, OFF_SPEC)
    srd(a, 28, 10, 11, SZ_WT, OFF_WT)
    srd(a, 32, 10, 11, SZ_XN, OFF_XN)
    D = 8
    WL = 24
    T = 44; U = 60
    TW1 = 68; TW2 = 84
    tmp = 100
    for r in range(8):
        a(f'buffer_load_ushort v{D+2*r}, v4, s[12:15], 0 offen offset:{r*128}')
        a(f'buffer_load_ushort v{D+2*r+1}, v4, s[12:15], 0 offen offset:{1024+r*128}')
    for r in range(5):
        a(f'buffer_load_ushort v{WL+4*r}, v5, s[16:19], 0 offen offset:{r*128}')
        a(f'buffer_load_ushort v{WL+4*r+1}, v5, s[20:23], 0 offen offset:{r*128}')
        a(f'buffer_load_ushort v{WL+4*r+2}, v5, s[16:19], 0 offen offset:{514+r*128}')
        a(f'buffer_load_ushort v{WL+4*r+3}, v5, s[20:23], 0 offen offset:{514+r*128}')
    tw_rows(a, 1, TW1, TW2, tmp)
    WB = 104
    a('v_mul_u32_u24 v125, 5120, v2')
    a('v_lshl_add_u32 v120, v1, 3, v125')
    a('v_lshrrev_b32 v126, 3, v1\nv_and_b32 v127, 7, v1')
    a('v_mul_u32_u24 v128, 72, v126\nv_add_u32 v128, v128, v127\nv_lshl_add_u32 v121, v128, 3, v125')
    a('v_mul_u32_u24 v128, 9, v126\nv_add_u32 v128, v128, v127\nv_lshl_add_u32 v122, v128, 3, v125')
    a('v_mul_u32_u24 v128, 72, v126\nv_mul_u32_u24 v129, 9, v127\nv_add_u32 v128, v128, v129\nv_lshl_add_u32 v123, v128, 3, v125')
    a('v_sub_u32 v128, 64, v1\nv_lshl_add_u32 v124, v128, 3, v125')
    a('s_waitcnt vmcnt(20)')
    stamp(a, 1)
    for i in range(16):
        a(f'v_lshlrev_b32 v{D+i}, 16, v{D+i}')
    S0, S1 = tmp, tmp+1
    Q0, Q1 = tmp+2, tmp+3
    for (s, o) in ((S0, 0), (S1, 1)):
        a(f'v_add_f32 v{s}, v{D+o}, v{D+2+o}')
        for r in range(2, 8):
            a(f'v_add_f32 v{s}, v{s}, v{D+2*r+o}')
    allreduce_add(a, S0, tmp+4); allreduce_add(a, S1, tmp+5)
    a(f'v_mul_f32 v{S0}, 0x{f2u(1/512):x}, v{S0}\nv_mul_f32 v{S1}, 0x{f2u(1/512):x}, v{S1}')
    for (q, s, o) in ((Q0, S0, 0), (Q1, S1, 1)):
        for r in range(8):
            a(f'v_sub_f32 v{T+r}, v{D+2*r+o}, v{s}')
        a(f'v_mul_f32 v{q}, v{T}, v{T}')
        for r in range(1, 8):
            a(f'v_fma_f32 v{q}, v{T+r}, v{T+r}, v{q}')
    allreduce_add(a, Q0, tmp+4); allreduce_add(a, Q1, tmp+5)
    a(f'v_mul_f32 v{Q0}, 0x{f2u(1/512):x}, v{Q0}\nv_mul_f32 v{Q1}, 0x{f2u(1/512):x}, v{Q1}')
    round_bf16_pair(a, Q0, Q1, tmp+4)
    round_bf16_pair(a, S0, S1, tmp+4)
    a(f'v_add_f32 v{Q0}, 0x{f2u(1e-5):x}, v{Q0}\nv_add_f32 v{Q1}, 0x{f2u(1e-5):x}, v{Q1}')
    round_bf16_pair(a, Q0, Q1, tmp+4)
    a(f'v_sqrt_f32 v{Q0}, v{Q0}\nv_sqrt_f32 v{Q1}, v{Q1}\ns_nop 0')
    round_bf16_pair(a, Q0, Q1, tmp+4)
    R0, R1 = tmp+6, tmp+7
    a(f'v_rcp_f32 v{R0}, v{Q0}\nv_rcp_f32 v{R1}, v{Q1}')
    for i in range(16):
        s = S0 if i % 2 == 0 else S1
        a(f'v_sub_f32 v{D+i}, v{D+i}, v{s}')
    for r in range(8):
        round_bf16_pair(a, D+2*r, D+2*r+1, tmp+4)
    for i in range(16):
        rr = R0 if i % 2 == 0 else R1; q = Q0 if i % 2 == 0 else Q1
        a(f'v_mul_f32 v{T}, v{D+i}, v{rr}')
        a(f'v_fma_f32 v{T+1}, -v{T}, v{q}, v{D+i}')
        a(f'v_fma_f32 v{D+i}, v{T+1}, v{rr}, v{T}')
    for r in range(8):
        round_bf16_pair(a, D+2*r, D+2*r+1, tmp+4)
    for r in range(8):
        a(f'buffer_store_short_d16_hi v{D+2*r}, v4, s[32:35], 0 offen offset:{r*128}')
        a(f'buffer_store_short_d16_hi v{D+2*r+1}, v4, s[32:35], 0 offen offset:{1024+r*128}')
    stamp(a, 2)
    X = [D+2*r for r in range(8)]
    r8(a, X, T, U, 36, False)
    for k0 in range(1, 8):
        cmul_tw(a, X[k0], TW1+2*k0, tmp+4, False)
    for k0 in range(8):
        a(f'ds_write_b64 v120, v[{X[k0]}:{X[k0]+1}] offset:{k0*576}')
    a('s_waitcnt lgkmcnt(0)')
    for n1 in range(8):
        a(f'ds_read_b64 v[{X[n1]}:{X[n1]+1}], v121 offset:{n1*64}')
    a('s_waitcnt lgkmcnt(0)')
    r8(a, X, T, U, 36, False)
    for k1 in range(8):
        cmul_tw(a, X[k1], TW2+2*k1, tmp+4, False)
    for k1 in range(8):
        a(f'ds_write_b64 v122, v[{X[k1]}:{X[k1]+1}] offset:{k1*576}')
    a('s_waitcnt lgkmcnt(0)')
    for n0 in range(8):
        a(f'ds_read_b64 v[{X[n0]}:{X[n0]+1}], v123 offset:{n0*8}')
    a('s_waitcnt lgkmcnt(0)')
    r8(a, X, T, U, 36, False)
    a('s_waitcnt vmcnt(16)')
    for r in range(5):
        a(f'v_lshl_or_b32 v{WL+4*r}, v{WL+4*r+1}, 16, v{WL+4*r}')
        a(f'v_lshl_or_b32 v{WL+4*r+1}, v{WL+4*r+3}, 16, v{WL+4*r+2}')
    for r in range(4, 8):
        a(f'ds_write_b64 v120, v[{X[r]}:{X[r]+1}] offset:{(r-4)*512}')
    a(f'ds_write_b64 v120, v[{X[0]}:{X[0]+1}] offset:{2048}')
    a('s_waitcnt lgkmcnt(0)')
    M = T
    for r in range(4):
        a(f'ds_read_b64 v[{M+2*r}:{M+2*r+1}], v124 offset:{(3-r)*512}')
    a('v_lshlrev_b32 v128, 13, v1\nv_lshl_add_u32 v128, v3, 2, v128')
    a('v_lshlrev_b32 v129, 14, v1\nv_lshl_add_u32 v129, v3, 3, v129')
    a('s_waitcnt lgkmcnt(0)')
    stamp(a, 3)
    O = TW1
    def sep(o, z, m):
        a(f'v_add_f32 v{o}, v{z}, v{m}\nv_sub_f32 v{o+1}, v{z+1}, v{m+1}')
        a(f'v_add_f32 v{o+2}, v{z+1}, v{m+1}\nv_sub_f32 v{o+3}, v{m}, v{z}')
    for r in range(4):
        sep(O+4*r, X[r], M+2*r)
        a(f's_mov_b32 s41, 0x{r*64*16384:x}')
        a(f'buffer_store_dwordx4 v[{O+4*r}:{O+4*r+3}], v129, s[24:27], s41 offen')
        a(f's_mov_b32 s42, 0x{r*64*8192:x}')
        a(f'buffer_store_dwordx2 v[{WL+4*r}:{WL+4*r+1}], v128, s[28:31], s42 offen')
    sep(O+16, X[4], X[4])
    a('v_cmp_eq_u32 vcc, 0, v1\ns_and_saveexec_b64 s[44:45], vcc')
    a(f's_mov_b32 s41, 0x{256*16384:x}')
    a(f'buffer_store_dwordx4 v[{O+16}:{O+19}], v129, s[24:27], s41 offen')
    a(f's_mov_b32 s42, 0x{256*8192:x}')
    a(f'buffer_store_dwordx2 v[{WL+16}:{WL+17}], v128, s[28:31], s42 offen')
    if os.environ.get('DBGT'): a('s_waitcnt vmcnt(0)')
    stamp(a, 4); a('s_waitcnt lgkmcnt(0)'); stamp_flush(a, 5)
    a.label('L_rows_done')
    a('s_endpgm')
    a.label('L_rows_wdt')
    import k_gemm2d
    a('s_sub_u32 s2, s2, 256')
    k_gemm2d.wdt_body(a, 's2', doD=not os.environ.get('WSPLIT'))
    return a.text(), kernel_desc(N, 132), f'; @launch kernel={N} grid=(480,1,1) block=(256,1,1) lds={4*5120}'
```
